```python
import torch

def _softmax(x, axis=-1):
    return torch.softmax(x, dim=axis)
def _gelu(x):
    return torch.nn.functional.gelu(x, approximate="tanh")
def _silu(x):
    return torch.nn.functional.silu(x)
def _sigmoid(x):
    return torch.sigmoid(x)
def _layernorm(x, axis=-1, eps=1e-5):
    m = x.mean(dim=axis, keepdim=True)
    v = x.var(dim=axis, keepdim=True, unbiased=False)
    return (x - m) / torch.sqrt(v + eps)
def _scatter_add(tgt, idx, src, axis=0):
    return tgt.clone().index_add_(axis, idx, src)
def _segment_sum(src, seg, n):
    out = torch.zeros((n,) + src.shape[1:], dtype=src.dtype)
    return out.index_add_(0, seg, src)
def _pad(x, pw):
    flat = tuple(v for pair in reversed(pw) for v in pair)
    return torch.nn.functional.pad(x, flat)

kernel_name = 'concat_heads__gqa_block_cached__gqa_block_cached__near_ridge'

def setup_inputs():

    _w = (lambda a: (lambda t: t.to(torch.bfloat16) if t.is_floating_point() else t)(torch.as_tensor(a)))
    def _A_setup():
        B, Sq, D = 8, 144, 576
        Hq, Hkv, Sk, Dh = 32, 16, 1024, 128
        assert Hq % Hkv == 0, (Hq, Hkv)
        return {
            "x": _w((lambda *s: torch.randn(*s, dtype=torch.bfloat16) * 0.8)(B, Sq, D)),
            "k_cache": _w((lambda *s: torch.randn(*s, dtype=torch.bfloat16) * 0.8)(B, Hkv, Sk, Dh)),
            "v_cache": _w((lambda *s: torch.randn(*s, dtype=torch.bfloat16) * 0.05)(B, Hkv, Sk, Dh)),
            "wq": _w((lambda *s: torch.randn(*s, dtype=torch.bfloat16) * 0.8)(D, Hq * Dh) * (D ** -0.5)),
            "wo": _w((lambda *s: torch.randn(*s, dtype=torch.bfloat16) * 0.05)(Hq * Dh, D) * ((Hq * Dh) ** -0.5)),
        }
    _A_in = _A_setup()

    def _B_setup():
        B, Sq, D = 8, 144, 576
        Hq, Hkv, Sk, Dh = 32, 16, 1024, 128
        assert Hq % Hkv == 0, (Hq, Hkv)
        return {
            "x": _w((lambda *s: torch.randn(*s, dtype=torch.bfloat16) * 0.8)(B, Sq, D)),
            "k_cache": _w((lambda *s: torch.randn(*s, dtype=torch.bfloat16) * 0.8)(B, Hkv, Sk, Dh)),
            "v_cache": _w((lambda *s: torch.randn(*s, dtype=torch.bfloat16) * 0.05)(B, Hkv, Sk, Dh)),
            "wq": _w((lambda *s: torch.randn(*s, dtype=torch.bfloat16) * 0.8)(D, Hq * Dh) * (D ** -0.5)),
            "wo": _w((lambda *s: torch.randn(*s, dtype=torch.bfloat16) * 0.05)(Hq * Dh, D) * ((Hq * Dh) ** -0.5)),
        }
    _B_in = _B_setup()

    return {
        "A_x": _A_in["x"],
        "A_k_cache": _A_in["k_cache"],
        "A_v_cache": _A_in["v_cache"],
        "A_wq": _A_in["wq"],
        "A_wo": _A_in["wo"],
        "B_x": _B_in["x"],
        "B_k_cache": _B_in["k_cache"],
        "B_v_cache": _B_in["v_cache"],
        "B_wq": _B_in["wq"],
        "B_wo": _B_in["wo"],
    }

def reference(A_x, A_k_cache, A_v_cache, A_wq, A_wo, B_x, B_k_cache, B_v_cache, B_wq, B_wo):
    def _A_ref(x, k_cache, v_cache, wq, wo):
        B, Sq, D = x.shape
        Hq, Dh = 32, 128
        Hkv = k_cache.shape[1]
        rep = Hq // Hkv
        q = (lambda x, *d: x.permute(*d))((x @ wq).reshape(B, Sq, Hq, Dh), 0, 2, 1, 3)
        k = (lambda x, n, axis: torch.repeat_interleave(x, n, dim=axis))(k_cache, rep, axis=1)
        v = (lambda x, n, axis: torch.repeat_interleave(x, n, dim=axis))(v_cache, rep, axis=1)
        scores = torch.einsum("bhqd,bhkd->bhqk", q, k) * (Dh ** -0.5)
        p = _softmax(scores, axis=-1)
        o = torch.einsum("bhqk,bhkd->bhqd", p, v)
        return (lambda x, *d: x.permute(*d))(o, 0, 2, 1, 3).reshape(B, Sq, Hq * Dh) @ wo

    def _B_ref(x, k_cache, v_cache, wq, wo):
        B, Sq, D = x.shape
        Hq, Dh = 32, 128
        Hkv = k_cache.shape[1]
        rep = Hq // Hkv
        q = (lambda x, *d: x.permute(*d))((x @ wq).reshape(B, Sq, Hq, Dh), 0, 2, 1, 3)
        k = (lambda x, n, axis: torch.repeat_interleave(x, n, dim=axis))(k_cache, rep, axis=1)
        v = (lambda x, n, axis: torch.repeat_interleave(x, n, dim=axis))(v_cache, rep, axis=1)
        scores = torch.einsum("bhqd,bhkd->bhqk", q, k) * (Dh ** -0.5)
        p = _softmax(scores, axis=-1)
        o = torch.einsum("bhqk,bhkd->bhqd", p, v)
        return (lambda x, *d: x.permute(*d))(o, 0, 2, 1, 3).reshape(B, Sq, Hq * Dh) @ wo

    a = _A_ref(A_x, A_k_cache, A_v_cache, A_wq, A_wo)
    b = _B_ref(B_x, B_k_cache, B_v_cache, B_wq, B_wo)
    return torch.concatenate([a, b], axis=-1)
```

```python
import re

def regs(f, a, n=1):
    return [(f, a + i) for i in range(n)]

def rn(f, a, n=1):
    return f"{f}{a}" if n == 1 else f"{f}[{a}:{a+n-1}]"

class I:
    __slots__ = ("txt", "kind", "rd", "wr", "srcc", "tag")
    def __init__(self, txt, kind, rd=(), wr=(), srcc=(), tag=None):
        self.txt, self.kind, self.rd, self.wr, self.srcc, self.tag = txt, kind, list(rd), list(wr), list(srcc), tag
    def __repr__(self):
        return self.txt

_R = re.compile(r"\b([vas])(\d+)\b|\b([vas])\[(\d+):(\d+)\]")
def parse_ops(s):
    out = []
    for m in _R.finditer(s):
        if m.group(1):
            out.append([(m.group(1), int(m.group(2)))])
        else:
            out.append([(m.group(3), i) for i in range(int(m.group(4)), int(m.group(5)) + 1)])
    return out

def flat(l):
    return [x for y in l for x in y]

TRANS = ("v_exp_f32", "v_rcp_f32", "v_log_f32", "v_rsq_f32")

def ins(txt, tag=None):
    t = txt.strip()
    op = t.split()[0]
    rest = t[len(op):]
    if op.endswith(":"):
        return I(t, "label")
    if op.startswith("."):
        return I(t, "dir")
    parts = [p.strip() for p in rest.split(",")]
    ops = [flat(parse_ops(p)) for p in parts]
    special = lambda p: [("x", p)] if p in ("m0", "vcc", "exec", "scc") else []
    for i, p in enumerate(parts):
        w = p.split()[0] if p else ""
        ops[i] += special(w)
    if op.startswith("v_mfma"):
        return I(t, "mfma", rd=ops[1] + ops[2] + ops[3], wr=ops[0], srcc=ops[3], tag=tag)
    if op.startswith("ds_read"):
        return I(t, "dsr", rd=flat(ops[1:]), wr=ops[0], tag=tag)
    if op.startswith("ds_write"):
        return I(t, "dsw", rd=flat(ops), tag=tag)
    if op.startswith("buffer_load") or op.startswith("global_load"):
        if t.endswith(" lds"):
            return I(t, "dma", rd=flat(ops) + [("x", "m0")], tag=tag)
        return I(t, "vld", rd=flat(ops[1:]), wr=ops[0], tag=tag)
    if op.startswith("buffer_store") or op.startswith("global_store"):
        return I(t, "vst", rd=flat(ops), tag=tag)
    if op == "s_waitcnt":
        return I(t, "wait", tag=tag)
    if op == "s_barrier":
        return I(t, "bar", tag=tag)
    if op == "s_nop":
        return I(t, "nop", tag=tag)
    if op.startswith("s_cbranch") or op in ("s_branch", "s_endpgm", "s_setpc_b64"):
        return I(t, "branch", tag=tag)
    if op.startswith("s_load") or op.startswith("s_memtime") or op.startswith("s_buffer_load"):
        return I(t, "smem", rd=flat(ops[1:]), wr=ops[0], tag=tag)
    if op.startswith("s_cmp"):
        return I(t, "salu", rd=flat(ops), wr=[("x", "scc")], tag=tag)
    if op.startswith("s_"):
        return I(t, "salu", rd=flat(ops[1:]), wr=ops[0], tag=tag)
    if op.startswith("v_permlane32_swap") or op.startswith("v_permlane16_swap"):
        return I(t, "perm", rd=flat(ops), wr=flat(ops), tag=tag)
    if op.startswith("v_readfirstlane") or op.startswith("v_readlane"):
        return I(t, "rfl", rd=flat(ops[1:]), wr=ops[0], tag=tag)
    if op.startswith("v_cmp"):
        return I(t, "valu", rd=flat(ops[1:]), wr=ops[0], tag=tag)
    if op.startswith("v_"):
        k = "trans" if op.replace("_e32", "").replace("_e64", "") in TRANS else "valu"
        rd = flat(ops[1:])
        if op.startswith("v_fmac") or op.startswith("v_cndmask") and len(parts) == 3:
            rd = rd + (ops[0] if op.startswith("v_fmac") else [("x", "vcc")])
        return I(t, k, rd=rd, wr=ops[0], tag=tag)
    raise ValueError("unknown instruction: " + t)

def L(*txts):
    out = []
    for t in txts:
        for line in t.split("\n"):
            line = line.split(";")[0].strip()
            if line:
                out.append(ins(line))
    return out

ORDER = {"wait": 0, "bar": 1, "salu": 2, "nop": 2, "dsr": 3, "dsw": 3, "dma": 4, "vld": 4, "vst": 4}

def pace(mfmas, fill, keep_order=False):
    out = []
    for g, m in enumerate(mfmas):
        out.append(m)
        f = list(fill.get(g, []))
        if not keep_order:
            f.sort(key=lambda x: ORDER.get(x.kind, 5))
        out.extend(f)
    return out

COST = {"wait": 4, "bar": 4, "salu": 4, "nop": 4, "dsr": 4, "dsw": 4, "dma": 12, "vld": 12, "vst": 12,
        "valu": 4, "trans": 8, "perm": 4, "rfl": 4, "branch": 4, "smem": 4, "label": 0, "dir": 0}

def gap_costs(stream):
    res, cur, first, seen_valu = [], None, True, False
    for x in stream:
        if x.kind == "mfma":
            if cur is not None:
                res.append(cur)
            cur, first, seen_valu = 0, True, False
            continue
        if cur is None or x.kind in ("label", "dir"):
            continue
        c = COST[x.kind]
        if first and x.kind in ("wait", "salu", "nop", "bar"):
            c = 0
        if seen_valu and x.kind in ("dsr", "dsw"):
            c += 8
        if seen_valu and x.kind in ("dma", "vld", "vst"):
            c += 4
        if x.kind in ("valu", "trans", "perm"):
            seen_valu = True
        first = False
        cur += c
    if cur is not None:
        res.append(cur)
    return res

_LG = re.compile(r"lgkmcnt\((\d+)\)")

def add_lgkm_waits(stream, init=None, eager=3, hoist=True):
    out = []
    q = [(set(d), -100) for d in (init or [])]
    pos_of = []
    pos = [-1] * len(q)
    nm = 0
    last_mfma = -1
    for x in stream:
        if x.kind == "wait":
            m = _LG.search(x.txt)
            if m:
                n = int(m.group(1))
                while len(q) > n:
                    q.pop(0); pos.pop(0)
        touched = set(x.rd) | set(x.wr)
        need = -1
        for i, (d, _) in enumerate(q):
            if d & touched:
                need = i
        if need >= 0:
            at = len(out)
            if hoist and x.kind == "mfma" and last_mfma >= 0 and pos[need] < last_mfma:
                at = last_mfma + 1
            cur_gap = nm - (1 if at <= last_mfma + 1 and at != len(out) else 0)
            k = need
            while k + 1 < len(q) and pos[k + 1] < at and q[k + 1][1] <= cur_gap - eager:
                k += 1
            issued_before = sum(1 for p in pos if p < at)
            n = issued_before - (k + 1)
            if n > 15:
                k += n - 15
                n = 15
            assert 0 <= n <= 15, n
            w = ins(f"s_waitcnt lgkmcnt({n})")
            if at < len(out) and out[at].kind == "wait" and "lgkmcnt" not in out[at].txt:
                out[at] = ins(out[at].txt + f" lgkmcnt({n})")
            else:
                out.insert(at, w)
                pos = [p + 1 if p >= at else p for p in pos]
                if last_mfma >= at:
                    last_mfma += 1
            q = q[k + 1:]; pos = pos[k + 1:]
        out.append(x)
        if x.kind in ("dsr", "dsw"):
            q.append((set(x.wr), nm)); pos.append(len(out) - 1)
            assert len(q) <= 15 or True
        if x.kind == "smem":
            raise ValueError("smem inside auto-wait region")
        if x.kind == "mfma":
            last_mfma = len(out) - 1
            nm += 1
    return out, [d for d, _ in q]

def states(x):
    if x.kind == "nop":
        return int(x.txt.split()[1], 0) + 1
    if x.kind in ("label", "dir"):
        return 0
    return 1

def check_hazards(stream, name=""):
    errs = []
    n = len(stream)
    for i, p in enumerate(stream):
        rules = []
        if p.kind in ("valu", "trans", "perm"):
            vw = {r for r in p.wr if r[0] in "va"}
            sw = {r for r in p.wr if r[0] == "s" or r == ("x", "vcc")}
            if vw:
                rules += [(2, lambda c, vw=vw: c.kind == "mfma" and vw & set(c.rd), "valu->mfma"),
                          (2, lambda c, vw=vw: c.kind == "perm" and vw & set(c.rd), "valu->perm"),
                          (1, lambda c, vw=vw: c.kind == "rfl" and vw & set(c.rd), "valu->rfl")]
                if p.kind == "trans":
                    rules.append((1, lambda c, vw=vw: c.kind in ("valu", "perm") and vw & set(c.rd), "trans->valu"))
            if sw:
                rules += [(2, lambda c, sw=sw: c.kind in ("valu", "trans") and sw & set(c.rd), "valu sgpr->valu"),
                          (5, lambda c, sw=sw: c.kind in ("dma", "vld", "vst") and sw & set(c.rd), "valu sgpr->vmem")]
        if p.kind == "rfl":
            sw = set(p.wr)
            rules += [(2, lambda c, sw=sw: c.kind in ("valu", "trans") and sw & set(c.rd), "rfl->valu"),
                      (5, lambda c, sw=sw: c.kind in ("dma", "vld", "vst") and sw & set(c.rd), "rfl->vmem")]
        if p.kind == "mfma":
            d = set(p.wr)
            big = "32x32" in p.txt
            w = 12 if big else 8
            def mm(c, d=d, p=p):
                if c.kind != "mfma":
                    return False
                ab = set(c.rd) - set(c.srcc)
                if d & ab:
                    return True
                return False
            def mc(c, d=d, p=p):
                return c.kind == "mfma" and (d & set(c.srcc)) and set(c.srcc) != d
            rules += [(w, lambda c, d=d: c.kind in ("valu", "trans", "perm", "rfl", "dsr", "dsw", "vld", "vst", "dma")
                       and (d & (set(c.rd) | set(c.wr))), "mfma D->other"),
                      (w, mm, "mfma D->mfma AB"), (w - 2, mc, "mfma D->mfma C overlap")]
            sc = set(p.srcc)
            if sc:
                rules.append((7 if big else 3, lambda c, sc=sc: c.kind in ("valu", "trans", "perm") and sc & set(c.wr), "mfma C war"))
        if p.kind == "salu" and ("x", "m0") in p.wr:
            rules.append((1, lambda c: c.kind == "dma", "m0->dma"))
        if p.kind == "vst" and ("x3" in p.txt.split()[0] or "x4" in p.txt.split()[0]):
            data = set(flat(parse_ops(p.txt.split(",")[0 if p.txt.startswith("buffer") else 1])))
            rules.append((2, lambda c, data=data: set(c.wr) & data, "wide store war"))
        if p.kind in ("valu",) and ("x", "exec") in p.wr:
            rules.append((4, lambda c: c.kind in ("mfma", "perm", "rfl"), "exec->mfma"))
        for dist, pred, what in rules:
            s = 0
            j = i + 1
            while j < n and s < dist:
                c = stream[j]
                if pred(c):
                    errs.append(f"{name}: {what}: [{i}] {p.txt}  ->  [{j}] {c.txt}  (have {s}, need {dist})")
                    break
                s += states(c)
                j += 1
    return errs

def text(stream):
    return "\n".join((x.txt if x.kind in ("label",) else "    " + x.txt) for x in stream)
```

```python
import sys, math, struct
from asmlib import *

NAME = "concat_heads__gqa_block_cached__gqa_block_cached__near_ridge"

class Cfg:
    nt_kv = False
    touch_kv1 = True
    kv0_stage = 0
    stamps = False
    force_fallback = False
    k2_depth = 10

def f32(x):
    return "0x%08x" % struct.unpack("<I", struct.pack("<f", x))[0]

KSTR = 1040
KB0, VB0 = 0, 33280
BUFD = 66048
XB = 66048
XSZ = 18432
WQB = XB + 2 * XSZ
WQSZ = 16384
Q9X = WQB + 3 * WQSZ
MX = Q9X + 8192
FLG = MX + 2048
LDS1 = 163840
KA = [0, 1, 2, 3]
VA = [4, 5, 6, 7]
VDMA = 8
LS = [9, 10, 11]
MF = [12, 13, 14]
T0 = 15
QF = [32, 64, 96]
SB = [[128, 144], [160, 176]]
S9 = 192
NM = [208, 224, 240]
OA = [0, 64, 128]
KR, VR = 192, 224
sW, sBR, sHKV, sB = 3, 4, 5, 6
SRDX, SRDWQ, SRDK, SRDV, SRDO, SRDT = 20, 24, 28, 32, 36, 40
sDELTA, sKDST, sVDST, sOFF0, sOFF1, sCNT, sPASS = 44, 45, 46, 47, 48, 49, 50
sT = 52
sXDST, sWQDST, sSO = 60, 61, 62
sSTAMP = 64

def srd(n):
    return f"s[{n}:{n+3}]"

def mfma(d, df, a, af, b, bf, c=None, cf=None):
    cs = "0" if c is None else rn(cf, c, 16)
    return ins(f"v_mfma_f32_32x32x16_bf16 {rn(df,d,16)}, {rn(af,a,4)}, {rn(bf,b,4)}, {cs}")

def lane_id(v):
    return L(f"v_mbcnt_lo_u32_b32 v{v}, -1, 0", f"v_mbcnt_hi_u32_b32 v{v}, -1, v{v}")

def stamp(cfg, i):
    if not cfg.stamps:
        return []
    return [I(f"s_memtime s[{sSTAMP+2*i}:{sSTAMP+2*i+1}]", "salu")]

def attn_addr_init():
    l, a, b, c = T0, T0 + 1, T0 + 2, T0 + 3
    o = lane_id(l)
    o += L(f"v_bfe_u32 v{a}, v{l}, 2, 3",
           f"v_mul_u32_u24 v{a}, {KSTR}, v{a}",
           f"v_and_b32 v{b}, 3, v{l}",
           f"v_lshl_add_u32 v{a}, v{b}, 6, v{a}",
           f"v_lshrrev_b32 v{c}, 5, v{l}",
           f"v_lshl_add_u32 v{a}, v{c}, 4, v{a}")
    for p in range(4):
        o += L(f"s_add_u32 s{sT}, s{sW}, {p}", f"s_and_b32 s{sT}, s{sT}, 3", f"s_mul_i32 s{sT+1}, s{sT}, {8*KSTR}",
               f"v_add_u32 v{KA[p]}, s{sT+1}, v{a}")
    o += L(f"v_lshlrev_b32 v{a}, 10, v{c}",
           f"v_lshl_add_u32 v{a}, v{b}, 3, v{a}",
           f"v_bfe_u32 v{b}, v{l}, 2, 2",
           f"v_lshl_add_u32 v{a}, v{b}, 6, v{a}",
           f"v_bfe_u32 v{b}, v{l}, 4, 1",
           f"v_lshl_add_u32 v{a}, v{b}, 5, v{a}")
    for p in range(4):
        o += L(f"s_add_u32 s{sT}, s{sW}, {p}", f"s_and_b32 s{sT}, s{sT}, 3", f"s_lshl_b32 s{sT+1}, s{sT}, 13",
               f"s_add_u32 s{sT+1}, s{sT+1}, {VB0}", f"v_add_u32 v{VA[p]}, s{sT+1}, v{a}")
    o += L(f"v_and_b32 v{a}, 3, v{l}",
           f"v_lshlrev_b32 v{a}, 4, v{a}",
           f"v_bfe_u32 v{b}, v{l}, 2, 2",
           f"v_lshl_add_u32 v{a}, v{b}, 8, v{a}",
           f"v_lshrrev_b32 v{b}, 4, v{l}",
           f"v_lshl_add_u32 v{VDMA}, v{b}, 6, v{a}")
    o += L(f"s_mov_b32 s{sDELTA}, {BUFD}",
           f"s_mul_i32 s{sKDST}, s{sW}, {8*KSTR}",
           f"s_lshl_b32 s{sVDST}, s{sW}, 13",
           f"s_add_u32 s{sVDST}, s{sVDST}, {VB0}",
           f"s_mov_b32 s{sCNT}, 0")
    return o

def kdma(cfg, i, extra=0):
    nt = " nt" if cfg.nt_kv else ""
    m = ins(f"s_add_u32 m0, s{sKDST}, {extra + i*KSTR - (i&3)*1024}")
    d = ins(f"buffer_load_dwordx4 v{VDMA}, {srd(SRDK)}, s{sOFF0 + (i>>2)} offen offset:{(i&3)*1024}{nt} lds")
    return m, d

def vdma(cfg, i, extra=0):
    nt = " nt" if cfg.nt_kv else ""
    m = ins(f"s_add_u32 m0, s{sVDST}, {extra + (i>>2)*4096}") if (i & 3) == 0 else None
    d = ins(f"buffer_load_dwordx4 v{VDMA}, {srd(SRDV)}, s{sOFF0 + (i>>2)} offen offset:{(i&3)*1024}{nt} lds")
    return m, d

def set_off(blk):
    return L(f"s_lshl_b32 s{sOFF0}, s{sW}, 13", f"s_add_u32 s{sOFF0}, s{sOFF0}, {blk*32768}",
             f"s_add_u32 s{sOFF1}, s{sOFF0}, 4096")

def kread(p, kk):
    return ins(f"ds_read_b128 {rn('a',KR+4*kk,4)}, v{KA[p]} offset:{(kk>>1)*256 + (kk&1)*32}")

def vread(p, f, e):
    ks, dt = f >> 2, f & 3
    return ins(f"ds_read_b64_tr_b16 {rn('a',VR+4*f+2*e,2)}, v{VA[p]} offset:{ks*4096 + e*2048 + dt*256}")

def sreg(p, t):
    return S9 if t == 2 else SB[p & 1][t]

def qk(p, t, kk, zero=False):
    s = sreg(p, t)
    if kk == 0:
        return mfma(s, "v", KR, "a", QF[t], "v", None if zero else NM[t], "v")
    return mfma(s, "v", KR + 4 * kk, "a", QF[t] + 4 * kk, "v", s, "v")

def pv(p, t, f):
    ks, dt = f >> 2, f & 3
    return mfma(OA[t] + 16 * dt, "a", VR + 4 * f, "a", sreg(p, t) + 8 * ks, "v", OA[t] + 16 * dt, "a")

def softmax_ops(p, tiles):
    el = []
    ab = [t for t in tiles if t < 2]
    for half in range(2):
        for t in ab:
            el += [(t, half * 8 + i) for i in range(8)]
    if 2 in tiles:
        el += [(2, i) for i in range(16)]
    ops = []
    for n, (t, r) in enumerate(el):
        s = sreg(p, t)
        ops.append((n, ins(f"v_exp_f32 v{s+r}, v{s+r}")))
        ops.append((n + 1, ins(f"v_add_f32 v{LS[t]}, v{LS[t]}, v{s+r}")))
        if r & 1:
            dst = s + (r & 8) + ((r & 7) >> 1)
            ops.append((n + 1, ins(f"v_cvt_pk_bf16_f32 v{dst}, v{s+r-1}, v{s+r}")))
    return ops

def valu_sort(lst):
    return sorted(lst, key=lambda x: (ORDER.get(x.kind, 5), 1 if x.kind == "trans" else 0))

def attn_iter(cfg, last=False):
    M = []
    for kk in range(8): M += [qk(1, 0, kk), qk(1, 1, kk)]
    for f in range(8): M += [pv(0, 0, f), pv(0, 1, f)]
    for f in range(8): M += [pv(0, 2, f)]
    for kk in range(8): M += [qk(2, 0, kk), qk(2, 1, kk)]
    for f in range(8): M += [pv(1, 0, f), pv(1, 1, f)]
    for kk in range(8): M += [qk(3, 0, kk), qk(3, 1, kk)]
    for f in range(8): M += [pv(2, 0, f), pv(2, 1, f)]
    for kk in range(8): M += [qk(0, 0, kk), qk(0, 1, kk)]
    for kk in range(8): M += [qk(0, 2, kk)]
    for f in range(8): M += [pv(3, 0, f), pv(3, 1, f)]
    assert len(M) == 144
    F = {g: [] for g in range(144)}
    pre = []
    start = {1: 28, 2: 60, 3: 92, 0: 124}
    for p in range(4):
        for rel, x in softmax_ops(p, [0, 1, 2] if p == 0 else [0, 1]):
            g = start[p] + rel
            if p == 0 and g < 144:
                pre.append(x)
                if last:
                    continue
            F[g % 144].append(x)
    for p, q0 in ((0, 0), (1, 40), (2, 72), (3, 104)):
        for f in range(8):
            for e in range(2):
                F[q0 + 2 * f + e].append(vread(p, f, e))
    for p, g0 in ((2, 16), (3, 56), (0, 88), (1, 128)):
        if last and p in (0, 1):
            continue
        for kk in range(8):
            F[g0 + 2 * kk].append(kread(p, kk))
    if not last:
        F[87] += L("s_waitcnt vmcnt(8)", "s_barrier")
        F[127] += L("s_waitcnt vmcnt(8) lgkmcnt(0)", "s_barrier")
        for i in range(8):
            m, d = kdma(cfg, i)
            F[88 + 2 * i].append(m); F[89 + 2 * i].append(d)
            m, d = vdma(cfg, i)
            if m: F[128 + 2 * i].append(m)
            F[129 + 2 * i].append(d)
        tog = lambda v: ins(f"v_add_u32 v{v}, s{sDELTA}, v{v}")
        F[17].append(tog(VA[0])); F[33].append(tog(KA[2])); F[57].append(tog(VA[1])); F[71].append(tog(KA[3]))
        F[121].append(tog(VA[2])); F[123].append(ins(f"v_subrev_u32 v{KA[0]}, s{sDELTA}, v{KA[0]}"))
        F[125].append(tog(VA[3])); F[19].append(tog(KA[1]))
        F[105].append(ins(f"s_add_u32 s{sKDST}, s{sKDST}, s{sDELTA}"))
    else:
        F[60] += L("s_waitcnt vmcnt(0)", "s_barrier")
    for g in F:
        F[g] = valu_sort(F[g])
    return M, F, pre

def qphase(cfg, odd):
    XA = [T0 + i for i in range(4)]
    X9 = [T0 + 4 + i for i in range(4)]
    WA = T0 + 8
    WV = [32 + i for i in range(8)]
    XV = [40 + i for i in range(9)]
    TT = 50
    DUM = 30
    o = []
    l, a, b, c, d = TT, TT + 1, TT + 2, TT + 3, TT + 4
    o += lane_id(l)
    pend = []
    def wq_dma(stage):
        r = [ins(f"s_mov_b32 s{sSO}, {stage*262144}")]
        for cch in range(8):
            if (cch & 3) == 0:
                r.append(ins(f"s_add_u32 m0, s{sWQDST}, {(stage%3)*WQSZ + cch*1024}"))
            r.append(ins(f"buffer_load_dwordx4 v{WV[cch]}, {srd(SRDWQ)}, s{sSO} offen offset:{(cch&3)*1024} lds", tag=("wq", stage)))
        return r
    def x_dma(ch):
        r = [ins(f"s_movk_i32 s{sSO+1}, {ch*128}")]
        for i in range(9):
            if (i & 3) == 0:
                r.append(ins(f"s_add_u32 m0, s{sXDST}, {(ch&1)*XSZ + i*1024}"))
            r.append(ins(f"buffer_load_dwordx4 v{XV[i]}, {srd(SRDX)}, s{sSO+1} offen offset:{(i&3)*1024} lds", tag=("x", ch)))
        return r
    def with_nops(seq):
        r = []
        for x in seq:
            if x.kind == "dma" and r and ("x", "m0") in r[-1].wr:
                r.append(ins("s_nop 0"))
            r.append(x)
        return r
    if not odd:
        o += L(f"v_and_b32 v{a}, 3, v{l}", f"v_lshlrev_b32 v{a}, 4, v{a}",
               f"v_bfe_u32 v{b}, v{l}, 2, 2", f"v_lshl_add_u32 v{a}, v{b}, 13, v{a}",
               f"v_lshrrev_b32 v{b}, 4, v{l}", f"v_lshl_add_u32 v{a}, v{b}, 6, v{a}",
               f"s_lshl_b32 s{sT}, s{sW}, 7",
               f"v_add_u32 v{WV[0]}, s{sT}, v{a}")
        for cch in range(1, 8):
            o += L(f"v_add_u32 v{WV[cch]}, {cch*32768 - (cch&3)*1024}, v{WV[0]}")
        o += L(f"v_lshrrev_b32 v{a}, 3, v{l}",
               f"v_mul_u32_u24 v{b}, 1152, v{a}",
               f"v_lshrrev_b32 v{a}, 4, v{l}",
               f"v_and_b32 v{c}, 7, v{l}",
               f"v_xor_b32 v{a}, v{a}, v{c}",
               f"s_lshl_b32 s{sT}, s{sW}, 1",
               f"v_xor_b32 v{a}, s{sT}, v{a}",
               f"v_xor_b32 v{c}, 4, v{a}",
               f"s_mul_i32 s{sT}, s{sW}, {9*9216//2}",
               f"v_add_u32 v{b}, s{sT}, v{b}",
               f"v_lshl_add_u32 v{a}, v{a}, 4, v{b}",
               f"v_lshl_add_u32 v{c}, v{c}, 4, v{b}")
        for ii in range(9):
            o += L(f"v_add_u32 v{XV[ii]}, {ii*9216 - (ii&3)*1024}, v{c if ii&1 else a}")
        o += L(f"s_mul_i32 s{sXDST}, s{sW}, {9*1024//2}", f"s_add_u32 s{sXDST}, s{sXDST}, {XB}",
               f"s_lshl_b32 s{sWQDST}, s{sW}, 12", f"s_add_u32 s{sWQDST}, s{sWQDST}, {WQB}")
    o.append(I("@SRD", "dir"))
    if not odd:
        seq = x_dma(0) + wq_dma(0) + wq_dma(1) + wq_dma(2) + x_dma(1)
        o += with_nops(seq)
        pend += [x.tag for x in seq if x.kind == "dma"]
    else:
        o += odd_start(cfg, l, a, b, c, DUM)
    o += L(f"v_and_b32 v{a}, 31, v{l}", f"v_lshlrev_b32 v{a}, 7, v{a}",
           f"v_add_u32 v{a}, {XB + (8192 if odd else 0)}, v{a}",
           f"v_bfe_u32 v{b}, v{l}, 1, 3", f"v_lshrrev_b32 v{c}, 5, v{l}", f"v_xor_b32 v{b}, v{b}, v{c}",
           f"v_and_b32 v{d}, 15, v{l}", f"v_lshlrev_b32 v{d}, 7, v{d}", f"v_add_u32 v{d}, {XB + 16384}, v{d}")
    for ks in range(4):
        o += L(f"v_xor_b32 v{c}, {2*ks}, v{b}", f"v_lshl_add_u32 v{XA[ks]}, v{c}, 4, v{a}",
               f"v_lshl_add_u32 v{X9[ks]}, v{c}, 4, v{d}")
    o += L(f"v_lshrrev_b32 v{a}, 5, v{l}", f"v_lshlrev_b32 v{a}, 11, v{a}",
           f"v_bfe_u32 v{b}, v{l}, 2, 2", f"v_lshl_add_u32 v{a}, v{b}, 6, v{a}",
           f"v_bfe_u32 v{b}, v{l}, 4, 1", f"v_lshl_add_u32 v{a}, v{b}, 5, v{a}",
           f"v_and_b32 v{b}, 1, v{l}", f"v_lshl_add_u32 v{a}, v{b}, 4, v{a}",
           f"v_bfe_u32 v{b}, v{l}, 1, 1", f"v_lshl_add_u32 v{a}, v{b}, 3, v{a}",
           f"s_lshr_b32 s{sT}, s{sW}, 1", f"s_lshl_b32 s{sT}, s{sT}, 13", f"s_add_u32 s{sT}, s{sT}, {WQB}",
           f"v_add_u32 v{WA}, s{sT}, v{a}")
    dts = [2, 3, 0, 1] if odd else [0, 1, 2, 3]
    ACC = [128, 192]
    ACC9 = 96
    def FB(t): return 192 + (t & 1) * 28
    def reads(t):
        st, ch, ks = t >> 1, t >> 2, t & 3
        fb = FB(t)
        xo = (ch & 1) * XSZ
        xr = [ins(f"ds_read_b128 {rn('a',fb+16,4)}, v{XA[ks]} offset:{xo}"),
              ins(f"ds_read_b128 {rn('a',fb+20,4)}, v{XA[ks]} offset:{xo+4096}"),
              ins(f"ds_read_b128 {rn('a',fb+24,4)}, v{X9[ks]} offset:{xo}")]
        wr = lambda dt: [ins(f"ds_read_b64_tr_b16 {rn('a',fb+4*dt+2*e,2)}, v{WA} offset:{(st%3)*WQSZ + (t&1)*4096 + e*1024 + dt*256}") for e in range(2)]
        return [xr[0]] + wr(dts[0]) + [xr[1], xr[2]] + wr(dts[1]) + wr(dts[2]) + wr(dts[3])
    def vm_wait(stage):
        need = [("wq", stage)] + ([("x", stage >> 1)] if stage % 2 == 0 else [])
        last = max(i for i, tg in enumerate(pend) if tg in need)
        return len(pend) - 1 - last
    if not odd:
        o += L(f"s_waitcnt vmcnt({vm_wait(0)})")
    o += L("s_barrier")
    o += stamp(cfg, 1)
    body = reads(0)
    M, F = [], {}
    zero = [ins(f"v_accvgpr_write_b32 a{i}, 0") for i in range(192)]
    dq = []
    kvq = odd_kv0(cfg) if (odd and cfg.kv0_stage > 0) else []
    for t in range(36):
        g0 = len(M)
        fb = FB(t)
        for j, dt in enumerate(dts):
            for tl in range(2):
                acc = ACC[tl] + 16 * dt
                M.append(mfma(acc, "v", fb + 4 * dt, "a", fb + 16 + 4 * tl, "a", None if t == 0 else acc, "v"))
            if j < 2:
                acc = ACC9 + 16 * j
                M.append(mfma(acc, "v", fb + 4 * dt, "a", fb + 24, "a", None if t == 0 else acc, "v"))
        for g in range(g0, g0 + 10):
            F[g] = []
        if t + 1 < 36:
            r = reads(t + 1)
            if t & 1:
                i = (t + 1) >> 1
                w = f"s_waitcnt vmcnt({vm_wait(i)}) lgkmcnt(0)" if not odd else "s_waitcnt lgkmcnt(0)"
                F[g0 + 2] += L(w, "s_barrier")
                slots = [2, 3, 3, 4, 4, 5, 6, 7, 8, 9, 9]
                if not odd:
                    assert not dq, "dma queue not drained"
                    if i + 2 < 18:
                        dq += wq_dma(i + 2)
                    if i % 2 == 0 and i // 2 + 1 < 9:
                        dq += x_dma(i // 2 + 1)
                dstart = 2
            else:
                slots = [0, 0, 1, 2, 3, 4, 5, 6, 7, 8, 9]
                dstart = 0
            for x, s in zip(r, slots):
                F[g0 + s].append(x)
        else:
            dstart = 0
        if odd and kvq and t >= 2 * cfg.kv0_stage and not dq:
            dq += kvq[:12]; kvq = kvq[12:]
        for g in range(g0 + dstart, g0 + 10):
            if dq and dq[0].kind == "dma":
                x = dq.pop(0)
                F[g].append(x)
                if not odd: pend.append(x.tag)
            while dq and dq[0].kind != "dma":
                x = dq.pop(0)
                x2 = I(x.txt, "salu_late", x.rd, x.wr)
                F[g].append(x2)
        for g in range(g0, g0 + 10):
            if not any(y.kind == "dma" for y in F[g]):
                for _ in range(2):
                    if zero: F[g].append(zero.pop())
    assert not zero and not dq and not kvq
    order = dict(ORDER); order["salu_late"] = 4.5
    for g in F:
        F[g].sort(key=lambda x: order.get(x.kind, 5))
        for x in F[g]:
            if x.kind == "salu_late": x.kind = "salu"
    body += pace(M, F, keep_order=True)
    sc = f32(math.log2(math.e) / math.sqrt(128.0))
    body += L(f"s_mov_b32 s{sT}, {sc}")
    def conv(src, dst, n):
        r = []
        for i in range(0, n, 2):
            r += L(f"v_mul_f32 v{src+i}, s{sT}, v{src+i}", f"v_mul_f32 v{src+i+1}, s{sT}, v{src+i+1}")
        for i in range(0, n, 2):
            r += L(f"v_cvt_pk_bf16_f32 v{dst+i//2}, v{src+i}, v{src+i+1}")
        return r
    body += L("s_nop 7")
    body += conv(ACC9, ACC9, 32)
    body += L(f"v_lshlrev_b32 v{a}, 4, v{l}", f"v_add_u32 v{a}, {Q9X}, v{a}",
              f"s_mov_b32 s{sT+2}, 0xffff", f"s_lshr_b32 s{sT+1}, s{sW}, 1", f"s_lshl_b32 s{sT+1}, s{sT+1}, 4",
              f"s_lshl_b32 s{sT+2}, s{sT+2}, s{sT+1}", f"s_mov_b32 s{sT+3}, s{sT+2}",
              f"s_mov_b64 exec, s[{sT+2}:{sT+3}]".replace(f"s[{sT+2}:{sT+3}]", f"s[{sT+2}:{sT+3}]"))
    for j in range(2):
        for u in range(2):
            body += L(f"ds_write_b128 v{a}, {rn('v',ACC9+8*j+4*u,4)} offset:{(2*dts[j]+u)*1024}")
    body += L("s_mov_b64 exec, -1")
    body += L(f"v_mov_b32 v{T0+16}, v{a}")
    body += conv(ACC[0], QF[0], 64)
    body += conv(ACC[1], QF[1], 64)
    body, _ = add_lgkm_waits(body)
    o += body
    return o

def odd_kv0(cfg):
    nt = " nt" if cfg.nt_kv else ""
    r = []
    for i in range(32):
        r.append(ins(f"s_add_u32 m0, m0, s{sXDST}" if i else f"s_mov_b32 m0, s{sWQDST}"))
        r.append(ins(f"s_movk_i32 s{sSO}, {i*1024}" if i < 32 else ""))
        r.append(ins(f"buffer_load_dwordx4 v{VDMA}, {srd(SRDT)}, s{sSO} offen{nt} lds"))
    return r

def odd_start(cfg, l, a, b, c, DUM):
    o = []
    o += L(f"s_getpc_b64 s[{sT+2}:{sT+3}]")
    o.append(I("L_pc1:", "label"))
    o.append(I(f"s_sub_u32 s{sT+2}, s{sT+2}, L_pc1-L_k1_begin", "salu"))
    o += L(f"s_subb_u32 s{sT+3}, s{sT+3}, 0")
    o += L(f"v_lshlrev_b32 v{a}, 7, v{l}",
           f"s_lshr_b32 s{sT}, s{sW}, 1", f"s_lshl_b32 s{sT}, s{sT}, 13", f"v_add_u32 v{a}, s{sT}, v{a}")
    o.append(I(f"s_mov_b32 s{sT+1}, L_k1_end-L_k1_begin-4", "salu", wr=[("s", sT+1)]))
    for i in range(cfg.code_pf):
        o += L(f"v_min_u32 v{b}, s{sT+1}, v{a}", f"global_load_dword v{DUM}, v{b}, s[{sT+2}:{sT+3}]",
               f"v_add_u32 v{a}, 16384, v{a}")
    o += L(f"s_lshr_b32 s{sT}, s2, 3",
           f"s_cmp_eq_u32 s{sW}, 1", "s_cbranch_scc0 L_touch_x")
    o += L(f"s_and_b32 s{sT+1}, s2, 3", f"s_lshl_b32 s{sT+1}, s{sT+1}, 11",
           f"s_add_u32 s{SRDT}, s14, s{sT+1}", f"s_addc_u32 s{SRDT+1}, s15, 0",
           f"s_sub_u32 s{SRDT+2}, {576*8192}, s{sT+1}", f"s_mov_b32 s{SRDT+3}, 0x00020000",
           f"v_lshrrev_b32 v{a}, 4, v{l}", f"v_lshlrev_b32 v{a}, 13, v{a}",
           f"v_and_b32 v{b}, 15, v{l}", f"v_lshl_add_u32 v{a}, v{b}, 7, v{a}",
           f"s_lshl_b32 s{sT}, s{sT}, 15", f"s_add_u32 s{sT}, s{sT}, {96*8192}")
    for t in range(4):
        o += L(f"buffer_load_dword v{DUM}, v{a}, {srd(SRDT)}, s{sT} offen", f"s_add_u32 s{sT}, s{sT}, {128*8192}")
    o += L(f"s_mov_b32 s{SRDT}, s{SRDK}", f"s_mov_b32 s{SRDT+1}, s{SRDK+1}", f"s_mov_b32 s{SRDT+2}, s{SRDK+2}",
           f"s_movk_i32 s{sXDST}, {KSTR}", f"s_mov_b32 s{sWQDST}, {KB0}", "s_branch L_touch_done")
    o.append(I("L_touch_x:", "label"))
    o += L(f"s_mov_b32 s{SRDT}, s8", f"s_mov_b32 s{SRDT+1}, s9", f"s_mov_b32 s{SRDT+2}, {8*165888}",
           f"s_mov_b32 s{SRDT+3}, 0x00020000",
           f"s_mul_i32 s{sT}, s{sT}, {36*1152}", f"s_add_u32 s{sT}, s{sT}, 256")
    for t in range(4):
        o += L(f"v_add_u32 v{a}, {t*64}, v{l}", f"v_mul_u32_u24 v{b}, 1821, v{a}", f"v_lshrrev_b32 v{b}, 16, v{b}",
               f"v_mul_u32_u24 v{c}, 36, v{b}", f"v_sub_u32 v{a}, v{a}, v{c}", f"v_mul_u32_u24 v{a}, 1152, v{a}",
               f"v_lshl_add_u32 v{a}, v{b}, 7, v{a}",
               f"buffer_load_dword v{DUM}, v{a}, {srd(SRDT)}, s{sT} offen")
    o += L(f"s_mov_b32 s{SRDT}, s{SRDV}", f"s_mov_b32 s{SRDT+1}, s{SRDV+1}", f"s_mov_b32 s{SRDT+2}, s{SRDV+2}",
           f"s_movk_i32 s{sXDST}, 1024", f"s_mov_b32 s{sWQDST}, {VB0}")
    o.append(I("L_touch_done:", "label"))
    if cfg.kv0_stage == 0:
        o += odd_kv0(cfg)
    if cfg.touch_kv1:
        o += L(f"v_lshlrev_b32 v{a}, 7, v{l}")
        for t in range(4):
            o += L(f"s_mov_b32 s{sT}, {32768 + t*8192}", f"buffer_load_dword v{DUM}, v{a}, {srd(SRDT)}, s{sT} offen")
    return o

def srd_setup():
    o = L("s_waitcnt lgkmcnt(0)")
    o += L(f"s_mul_i32 s{sT}, s{sB}, 165888",
           f"s_add_u32 s{SRDX}, s8, s{sT}", f"s_addc_u32 s{SRDX+1}, s9, 0", f"s_mov_b32 s{SRDX+2}, 165888", f"s_mov_b32 s{SRDX+3}, 0x00020000",
           f"s_lshl_b32 s{sT}, s{sHKV}, 9",
           f"s_add_u32 s{SRDWQ}, s14, s{sT}", f"s_addc_u32 s{SRDWQ+1}, s15, 0", f"s_sub_u32 s{SRDWQ+2}, {576*8192}, s{sT}", f"s_mov_b32 s{SRDWQ+3}, 0x00020000",
           f"s_lshl_b32 s{sT}, s{sB}, 4", f"s_add_u32 s{sT}, s{sT}, s{sHKV}", f"s_lshl_b32 s{sT}, s{sT}, 18",
           f"s_add_u32 s{SRDK}, s10, s{sT}", f"s_addc_u32 s{SRDK+1}, s11, 0", f"s_mov_b32 s{SRDK+2}, 262144", f"s_mov_b32 s{SRDK+3}, 0x00020000",
           f"s_add_u32 s{SRDV}, s12, s{sT}", f"s_addc_u32 s{SRDV+1}, s13, 0", f"s_mov_b32 s{SRDV+2}, 262144", f"s_mov_b32 s{SRDV+3}, 0x00020000",
           f"s_mul_i32 s{sT}, s{sBR}, {36*262144}",
           f"s_add_u32 s{SRDO}, s16, s{sT}", f"s_addc_u32 s{SRDO+1}, s17, 0", f"s_mov_b32 s{SRDO+2}, {36*262144}", f"s_mov_b32 s{SRDO+3}, 0x00020000")
    return o

def tile_max(s, dst):
    o = L(f"v_max3_f32 v{dst}, v{s}, v{s+1}, v{s+2}")
    for i in range(3, 15, 2):
        o += L(f"v_max3_f32 v{dst}, v{dst}, v{s+i}, v{s+i+1}")
    o += L(f"v_max_f32 v{dst}, v{dst}, v{s+15}")
    return o

def kernel1(cfg):
    o = [I("L_k1_begin:", "label")]
    o += stamp(cfg, 0)
    o += L("s_cmp_ge_u32 s2, 256", "s_cbranch_scc1 L_k1_exit")
    o += L(f"s_bfe_u32 s{sBR}, s2, 0x10002", f"s_mul_i32 s{sT}, s{sBR}, 40")
    o.append(I(f"s_load_dwordx8 s[8:15], s[0:1], s{sT}", "salu"))
    o.append(I("s_load_dwordx2 s[16:17], s[0:1], 96", "salu"))
    o += L(f"v_lshrrev_b32 v1, 6, v0",
           f"s_and_b32 s{sHKV}, s2, 3", f"s_lshl_b32 s{sHKV}, s{sHKV}, 2", f"s_bfe_u32 s{sT}, s2, 0x20003",
           f"s_add_u32 s{sHKV}, s{sHKV}, s{sT}", f"s_lshr_b32 s{sB}, s2, 5",
           f"v_readfirstlane_b32 s{sW}, v1", f"s_mov_b32 s{sPASS}, 0", "s_nop 1")
    o += attn_addr_init()
    o += L(f"s_bitcmp1_b32 s{sW}, 0", "s_cbranch_scc1 L_q_odd")
    def subst(lst):
        r = []
        for x in lst:
            r += srd_setup() if x.txt == "@SRD" else [x]
        return r
    o += subst(qphase(cfg, False))
    o += L("s_branch L_q_done")
    o.append(I("L_q_odd:", "label"))
    o += subst(qphase(cfg, True))
    o.append(I("L_q_done:", "label"))
    ninf = f32(-3.0e38)
    o += L(*[f"v_mov_b32 v{MF[t]}, {ninf}" for t in range(3)])
    o += L("s_waitcnt vmcnt(0) lgkmcnt(0)", "s_barrier")
    o += stamp(cfg, 2)
    o.append(I("L_attn_start:", "label"))
    P = []
    P += [kread(0, kk) for kk in range(8)]
    P += [ins(f"ds_read_b128 {rn('v',QF[2]+4*kk,4)}, v{T0+16} offset:{kk*1024}") for kk in range(8)]
    P += set_off(1)
    dm = []
    for i in range(8):
        m, d = kdma(cfg, i, BUFD); dm.append([m, d])
    for i in range(8):
        m, d = vdma(cfg, i, BUFD); dm.append([m, d] if m else [d])
    M = [qk(0, 0, kk, True) for kk in range(8)] + [qk(0, 1, kk, True) for kk in range(8)] + [qk(0, 2, kk, True) for kk in range(8)]
    F = {g: [] for g in range(24)}
    P.append(dm[0][0])
    for i in range(16):
        F[i].append(dm[i][-1])
        if i + 1 < 16 and len(dm[i + 1]) == 2:
            F[i].append(dm[i + 1][0])
    P += L(*[f"v_mov_b32 v{LS[t]}, 0" for t in range(3)])
    def mref(t):
        s = sreg(0, t); a, b = T0 + 2 * t, T0 + 2 * t + 1
        r = tile_max(s, a)
        r += L(f"v_mov_b32 v{b}, v{a}", "s_nop 1", f"v_permlane32_swap_b32 v{a}, v{b}",
               f"v_max3_f32 v{a}, v{a}, v{b}, v{MF[t]}", f"v_sub_f32 v{NM[t]}, 0, v{a}")
        r += L(*[f"v_mov_b32 v{NM[t]+i}, v{NM[t]}" for i in range(1, 16)])
        r += L(*[f"v_add_f32 v{s+i}, v{s+i}, v{NM[t]}" for i in range(16)])
        return r
    ra = mref(0)
    per = (len(ra) + 10) // 11
    for i, x in enumerate(ra):
        F[13 + i // per].append(x)
    P += pace(M, F, keep_order=True)
    P += [kread(1, kk) for kk in range(8)]
    P += L(f"v_add_u32 v{KA[0]}, s{sDELTA}, v{KA[0]}")
    P += mref(1) + mref(2)
    Mi, Fi, pre = attn_iter(cfg)
    pre_sorted = []
    exps = [x for x in pre if x.kind == "trans"]
    rest = [x for x in pre if x.kind != "trans"]
    P += exps + L("s_nop 0") + rest
    P += set_off(2)
    P += L("s_waitcnt lgkmcnt(0)")
    P, _ = add_lgkm_waits(P)
    o += P
    o += stamp(cfg, 3)
    body = pace(Mi, Fi, keep_order=True)
    tail = L(f"s_add_u32 s{sVDST}, s{sVDST}, s{sDELTA}", f"s_sub_u32 s{sDELTA}, 0, s{sDELTA}",
             f"s_add_u32 s{sOFF0}, s{sOFF0}, 32768", f"s_add_u32 s{sOFF1}, s{sOFF1}, 32768",
             f"s_add_u32 s{sCNT}, s{sCNT}, 1", f"s_cmp_lt_u32 s{sCNT}, 7", "s_cbranch_scc1 L_loop")
    _, outq = add_lgkm_waits(body)
    body2, outq2 = add_lgkm_waits(body, init=outq)
    assert outq == outq2
    errs = check_hazards(body2 + tail + body2, "loop")
    assert not errs, "\n".join(errs)
    gc = gap_costs(body2)
    print("loop gap costs: max", max(gc), "sum", sum(gc), "over24:", [(i, c) for i, c in enumerate(gc) if c > 24], file=sys.stderr)
    o.append(I(".p2align 6", "dir"))
    o.append(I("L_loop:", "label"))
    o += body2 + tail
    Ml, Fl, _ = attn_iter(cfg, last=True)
    lastb = []
    for g, m in enumerate(Ml):
        if not (104 <= g < 128):
            lastb.append(m)
            lastb += Fl[g]
        else:
            lastb += sorted(Fl[g], key=lambda x: (ORDER.get(x.kind, 5), 0 if x.kind == "trans" else 1))
    lastb, _ = add_lgkm_waits(lastb, init=outq)
    o += lastb
    o += stamp(cfg, 4)
    E = []
    l = T0
    E += lane_id(l)
    for t in range(3):
        b = T0 + 1 + t
        E += L(f"v_mov_b32 v{b}, v{LS[t]}")
    E += L("s_nop 0")
    for t in range(3):
        b = T0 + 1 + t
        E += L(f"v_permlane32_swap_b32 v{LS[t]}, v{b}")
    for t in range(3):
        b = T0 + 1 + t
        E += L(f"v_add_f32 v{LS[t]}, v{LS[t]}, v{b}")
    thr = f32(0.0) if cfg.force_fallback else f32(2.0 ** 30)
    E += L(f"v_max3_f32 v{T0+1}, v{LS[0]}, v{LS[1]}, v{LS[2]}",
           f"v_add_f32 v{T0+2}, v{LS[0]}, v{LS[1]}", f"v_add_f32 v{T0+2}, v{T0+2}, v{LS[2]}",
           f"s_mov_b32 s{sT}, {thr}",
           f"v_cmp_gt_f32 vcc, s{sT}, v{T0+2}",
           f"v_lshlrev_b32 v{T0+4}, 4, v{l}",
           f"v_lshlrev_b32 v{T0+5}, 2, v{l}",
           f"s_lshl_b32 s{sT+1}, s{sW}, 14", f"v_add_u32 v{T0+6}, s{sT+1}, v{T0+4}",
           f"s_lshl_b32 s{sT+1}, s{sW}, 8", f"s_add_u32 s{sT+1}, s{sT+1}, {MX}", f"v_add_u32 v{T0+7}, s{sT+1}, v{T0+5}",
           "s_cmp_eq_u64 vcc, -1", f"s_cselect_b32 s{sT+2}, 0, 1",
           f"v_mov_b32 v{T0+8}, s{sT+2}",
           f"s_lshl_b32 s{sT+1}, s{sW}, 2", f"s_add_u32 s{sT+1}, s{sT+1}, {FLG}", f"v_mov_b32 v{T0+9}, s{sT+1}",
           f"ds_write_b32 v{T0+9}, v{T0+8}",
           f"ds_write_b32 v{T0+7}, v{NM[2]}", f"ds_write_b32 v{T0+7}, v{LS[2]} offset:1024")
    for dt in range(4):
        for g in range(4):
            E += L(f"ds_write_b128 v{T0+6}, {rn('a',OA[2]+16*dt+4*g,4)} offset:{dt*4096+g*1024}")
    E += L(f"v_rcp_f32 v{LS[0]}, v{LS[0]}", f"v_rcp_f32 v{LS[1]}, v{LS[1]}")
    E += L(f"s_lshl_b32 s{sT}, s{sB}, 2", f"s_and_b32 s{sT+1}, s{sW}, 1", f"s_lshl_b32 s{sT+1}, s{sT+1}, 1",
           f"s_add_u32 s{sT}, s{sT}, s{sT+1}", f"s_lshl_b32 s{sT}, s{sT}, 18",
           f"s_lshl_b32 s{sT+1}, s{sHKV}, 1", f"s_lshr_b32 s{sT+2}, s{sW}, 1", f"s_add_u32 s{sT+1}, s{sT+1}, s{sT+2}",
           f"s_lshl_b32 s{sT+1}, s{sT+1}, 13", f"s_add_u32 s{sT}, s{sT}, s{sT+1}",
           f"s_add_u32 s{sT+1}, s{sT}, 4096", f"s_add_u32 s{sT+2}, s{sT}, 262144", f"s_add_u32 s{sT+3}, s{sT+2}, 4096")
    W = 128
    n = 0
    for t in range(2):
        for f in range(8):
            w = W + (n % 4) * 16; n += 1
            E += L(*[f"v_accvgpr_read_b32 v{w+i}, a{OA[t]+8*f+i}" for i in range(8)])
            E += L(*[f"v_mul_f32 v{w+i}, v{w+i}, v{LS[t]}" for i in range(8)])
            E += L(*[f"v_cvt_pk_bf16_f32 v{w+8+i}, v{w+2*i}, v{w+2*i+1}" for i in range(4)])
            E += L(f"buffer_store_dwordx4 {rn('v',w+8,4)}, v{T0+4}, {srd(SRDO)}, s{sT+2*t+(f>>2)} offen offset:{(f&3)*1024}")
    E += L("s_waitcnt lgkmcnt(0)", "s_barrier")
    R = 128
    E += L(f"v_mov_b32 v{T0+9}, {FLG}", f"ds_read_b128 {rn('v',T0+10+0,4).replace('v[25:28]','v[26:29]')}, v{T0+9}")
    E += L(f"v_add_u32 v{T0+7}, {MX}, v{T0+5}")
    for w in range(4):
        E += L(f"ds_read_b32 v{192+w}, v{T0+7} offset:{w*256}", f"ds_read_b32 v{196+w}, v{T0+7} offset:{1024+w*256}")
    E += L(f"s_lshl_b32 s{sT+1}, s{sW}, 12", f"v_add_u32 v{T0+6}, s{sT+1}, v{T0+4}")
    E += L("s_waitcnt lgkmcnt(8)", "v_or3_b32 v26, v26, v27, v28", "v_or_b32 v26, v26, v29", "s_nop 0",
           f"v_readfirstlane_b32 s{sT+4}, v26")
    for w in range(4):
        for g in range(4):
            if w == 3 and g >= 1:
                continue
            E += L(f"ds_read_b128 {rn('v',R+16*w+4*g,4)}, v{T0+6} offset:{w*16384+g*1024}")
    E += L(f"s_andn2_b32 s{sT+4}, s{sT+4}, s{sPASS}", "s_cbranch_scc1 L_fallback")
    E += L("s_waitcnt lgkmcnt(13)")
    for g in range(1, 4):
        E += L(f"ds_read_b128 {rn('v',R+48+4*g,4)}, v{T0+6} offset:{3*16384+g*1024}")
    E += L("v_min3_f32 v200, v192, v193, v194", "v_min_f32 v200, v200, v195")
    for w in range(4):
        E += L(f"v_sub_f32 v{192+w}, v200, v{192+w}")
    for w in range(4):
        E += L(f"v_exp_f32 v{192+w}, v{192+w}")
    E += L("s_nop 0", "v_mul_f32 v200, v192, v196")
    for w in range(1, 4):
        E += L(f"v_fmac_f32 v200, v{192+w}, v{196+w}")
    E += L("v_rcp_f32 v200, v200", "s_nop 0")
    for w in range(4):
        E += L(f"v_mul_f32 v{192+w}, v{192+w}, v200")
    for i in range(16):
        E += L(f"v_mul_f32 v{R+i}, v{R+i}, v192")
    for w in range(1, 4):
        for i in range(16):
            E += L(f"v_fmac_f32 v{R+i}, v{R+16*w+i}, v{192+w}")
    for i in range(8):
        E += L(f"v_cvt_pk_bf16_f32 v{R+16+i}, v{R+2*i}, v{R+2*i+1}")
    E += L(f"s_lshr_b32 s{sT}, s{sB}, 1", f"s_add_u32 s{sT}, s{sT}, 32", f"s_lshl_b32 s{sT}, s{sT}, 18",
           f"s_lshl_b32 s{sT+1}, s{sHKV}, 14", f"s_add_u32 s{sT}, s{sT}, s{sT+1}",
           f"s_lshl_b32 s{sT+1}, s{sW}, 11", f"s_add_u32 s{sT}, s{sT}, s{sT+1}",
           f"s_and_b32 s{sT+1}, s{sB}, 1", f"s_lshl_b32 s{sT+1}, s{sT+1}, 8", f"s_add_u32 s{sT}, s{sT}, s{sT+1}",
           f"v_and_b32 v{T0+1}, 0x2f, v{l}", f"v_lshlrev_b32 v{T0+1}, 4, v{T0+1}",
           f"v_bfe_u32 v{T0+2}, v{l}, 4, 1", f"v_lshl_add_u32 v{T0+1}, v{T0+2}, 13, v{T0+1}")
    for u in range(2):
        E += L(f"buffer_store_dwordx4 {rn('v',R+16+4*u,4)}, v{T0+1}, {srd(SRDO)}, s{sT} offen offset:{u*1024}")
    E, _ = add_lgkm_waits(L("s_nop 7", "s_nop 3") + E, hoist=False)
    o += E
    if cfg.stamps:
        o += L("s_waitcnt vmcnt(0)")
        o += stamp(cfg, 5)
        o += L("s_waitcnt lgkmcnt(0)",
               f"s_lshl_b32 s{sT}, s2, 2", f"s_add_u32 s{sT}, s{sT}, s{sW}", f"s_lshl_b32 s{sT}, s{sT}, 6",
               f"s_add_u32 s{SRDT}, s16, 0x2000000", f"s_addc_u32 s{SRDT+1}, s17, 0", f"s_mov_b32 s{SRDT+2}, 0x100000",
               f"s_mov_b32 s{SRDT+3}, 0x00020000", "v_mov_b32 v1, 0")
        for i in range(6):
            o += L(f"v_mov_b32 v2, s{sSTAMP+2*i}", f"v_mov_b32 v3, s{sSTAMP+2*i+1}",
                   f"buffer_store_dwordx2 v[2:3], v1, {srd(SRDT)}, s{sT} offen offset:{8*i}")
    o.append(I("L_k1_exit:", "label"))
    o += L("s_endpgm")
    o.append(I("L_fallback:", "label"))
    B = L("s_waitcnt vmcnt(0) lgkmcnt(0)", "s_barrier")
    B += L(f"v_mov_b32 v{T0+6}, v{T0+16}")
    B += attn_addr_init()
    B += L(f"s_mov_b32 s{sPASS}, -1")
    B += L(*[f"v_accvgpr_write_b32 a{i}, 0" for i in range(192)])
    B += set_off(0)
    B.append(I("L_fb_loop:", "label"))
    for i in range(8):
        m, d = kdma(cfg, i)
        B += [m, ins("s_nop 0"), d]
    B += L("s_waitcnt vmcnt(0)", "s_barrier")
    for p in range(4):
        B += [kread(p, kk) for kk in range(8)]
        B += L("s_waitcnt lgkmcnt(0)")
        for t in range(3):
            B += [qk(0, t, kk, True) for kk in range(8)]
        B += L("s_nop 7", "s_nop 3")
        for t in range(3):
            B += tile_max(sreg(0, t), T0)
            B += L(f"v_max_f32 v{MF[t]}, v{MF[t]}, v{T0}")
        B += L("s_nop 1")
    B += L("s_barrier", f"s_add_u32 s{sOFF0}, s{sOFF0}, 32768", f"s_add_u32 s{sOFF1}, s{sOFF1}, 32768",
           f"s_add_u32 s{sCNT}, s{sCNT}, 1", f"s_cmp_lt_u32 s{sCNT}, 8", "s_cbranch_scc1 L_fb_loop")
    for t in range(3):
        B += L(f"v_mov_b32 v{T0}, v{MF[t]}", "s_nop 1", f"v_permlane32_swap_b32 v{MF[t]}, v{T0}",
               f"v_max_f32 v{MF[t]}, v{MF[t]}, v{T0}")
    B += L(f"s_mov_b32 s{sCNT}, 0")
    B += set_off(0)
    for i in range(8):
        m, d = kdma(cfg, i)
        B += [m, ins("s_nop 0"), d]
    for i in range(8):
        m, d = vdma(cfg, i)
        B += ([m, ins("s_nop 0")] if m else []) + [d]
    B += L("s_waitcnt vmcnt(0)", "s_barrier", "s_branch L_attn_start")
    o += B
    o.append(I("L_k1_end:", "label"))
    errs = check_hazards(o, "k1")
    assert not errs, "\n".join(errs[:20])
    return o

def kernel2(cfg):
    D = cfg.k2_depth
    R = D + 2
    RB = D + 1
    SG, ST, SW = 1088, 4352, 26112
    assert R * 2048 <= SW
    o = []
    sM, sN = 5, 6
    SRDA, SRDB, SRDC = 20, 24, 28
    o += L("s_cmp_ge_u32 s2, 216", "s_cbranch_scc1 L_k2_exit")
    o += L(f"s_bfe_u32 s{sBR}, s2, 0x10002", f"s_mul_i32 s{sT}, s{sBR}, 40", f"s_add_u32 s{sT}, s{sT}, 32")
    o.append(I(f"s_load_dwordx2 s[8:9], s[0:1], s{sT}", "salu"))
    o.append(I("s_load_dwordx2 s[10:11], s[0:1], 80", "salu"))
    o.append(I("s_load_dwordx2 s[12:13], s[0:1], 96", "salu"))
    l = 1
    o += L("v_lshrrev_b32 v2, 6, v0", "v_and_b32 v1, 63, v0",
           f"s_lshr_b32 s{sT}, s2, 3", f"s_mul_i32 s{sN}, s{sT}, 43", f"s_lshr_b32 s{sN}, s{sN}, 7",
           f"v_readfirstlane_b32 s{sW}, v2",
           f"s_mul_i32 s{sT+1}, s{sN}, 3", f"s_sub_u32 s{sT}, s{sT}, s{sT+1}",
           f"s_and_b32 s{sM}, s2, 3", f"s_mul_i32 s{sM}, s{sM}, 3", f"s_add_u32 s{sM}, s{sM}, s{sT}")
    VO = [4, 5, 6]; VW = 7; VRD = 8
    o += L(f"s_lshl_b32 s{sT}, s{sW}, 16", "v_lshlrev_b32 v2, 4, v1", f"v_add_u32 v{VO[0]}, s{sT}, v2",
           f"v_add_u32 v{VO[1]}, 0x40000, v{VO[0]}", f"v_add_u32 v{VO[2]}, 0x80000, v{VO[0]}")
    o += L("v_bfe_u32 v2, v1, 2, 2", "v_lshrrev_b32 v3, 5, v1", "v_lshl_add_u32 v2, v3, 2, v2", "v_mul_u32_u24 v2, 1152, v2",
           "v_bfe_u32 v3, v1, 4, 1", "v_lshl_add_u32 v2, v3, 6, v2", "v_and_b32 v3, 3, v1", "v_lshl_add_u32 v2, v3, 4, v2",
           f"s_mul_i32 s{sT}, s{sW}, {1024*1152}", f"v_add_u32 v{VW}, s{sT}, v2",
           f"v_add_u32 v{VW+2}, {8*1152 - 1024}, v{VW}")
    o += L("v_lshrrev_b32 v2, 5, v1", "v_lshlrev_b32 v2, 9, v2", "v_bfe_u32 v3, v1, 2, 2", "v_lshl_add_u32 v2, v3, 6, v2",
           "v_bfe_u32 v3, v1, 4, 1", "v_lshl_add_u32 v2, v3, 5, v2", "v_and_b32 v3, 3, v1", "v_lshl_add_u32 v2, v3, 3, v2",
           f"s_mul_i32 s{sKDST}, s{sW}, {SW}", f"v_add_u32 v{VRD}, s{sKDST}, v2")
    o += L("s_waitcnt lgkmcnt(0)",
           f"s_mul_i32 s{sT}, s{sBR}, {36*262144}", f"s_mul_i32 s{sT+1}, s{sM}, {3*262144}", f"s_add_u32 s{sT}, s{sT}, s{sT+1}",
           f"s_add_u32 s{SRDB}, s12, s{sT}", f"s_addc_u32 s{SRDB+1}, s13, 0", f"s_mov_b32 s{SRDB+2}, {3*262144}", f"s_mov_b32 s{SRDB+3}, 0x00020000",
           f"s_lshl_b32 s{sT}, s{sN}, 7",
           f"s_add_u32 s{SRDA}, s8, s{sT}", f"s_addc_u32 s{SRDA+1}, s9, 0", f"s_sub_u32 s{SRDA+2}, {4096*1152}, s{sT}", f"s_mov_b32 s{SRDA+3}, 0x00020000",
           f"s_mov_b32 s{SRDC}, s10", f"s_mov_b32 s{SRDC+1}, s11", f"s_mov_b32 s{SRDC+2}, {1152*2304}", f"s_mov_b32 s{SRDC+3}, 0x00020000")
    BF = 16
    AF = BF + RB * 12
    ACC = 0
    def loads(t):
        r = L(f"s_add_u32 m0, s{sKDST}, {(t%R)*2048}", f"s_mov_b32 s{sSO}, {t*16*1152}")
        r += L(f"buffer_load_dwordx4 v{VW}, {srd(SRDA)}, s{sSO} offen lds",
               f"buffer_load_dwordx4 v{VW+2}, {srd(SRDA)}, s{sSO} offen offset:1024 lds")
        if t % 4 == 0:
            r += L(f"s_movk_i32 s{sSO+1}, {t*1024}" if t * 1024 < 32768 else f"s_mov_b32 s{sSO+1}, {t*1024}")
        for i in range(3):
            r += L(f"buffer_load_dwordx4 {rn('v',BF+(t%RB)*12+4*i,4)}, v{VO[i]}, {srd(SRDB)}, s{sSO+1} offen offset:{(t&3)*1024}")
        return r
    def areads(t):
        return [ins(f"ds_read_b64_tr_b16 {rn('v',AF+(t&1)*8+4*nt+2*e,2)}, v{VRD} offset:{(t%R)*2048 + e*1024 + nt*256}")
                for nt in range(2) for e in range(2)]
    body = []
    for t in range(D):
        body += loads(t)
    body += L(f"s_waitcnt vmcnt({5*(D-1)+3})") + areads(0)
    NS = 64
    for t in range(NS):
        issued = min(t + D, NS)
        M = [mfma(ACC + 16 * (i * 2 + nt), "a", AF + (t & 1) * 8 + 4 * nt, "v", BF + (t % RB) * 12 + 4 * i, "v",
                  None if t == 0 else ACC + 16 * (i * 2 + nt), "a") for i in range(3) for nt in range(2)]
        F = {g: [] for g in range(6)}
        if t + 1 < NS:
            body += L(f"s_waitcnt vmcnt({5*(issued-t-2)+3})")
            ar = areads(t + 1)
            F[0] += ar[:2]; F[1] += ar[2:]
        else:
            body += L("s_waitcnt vmcnt(0)")
        if t + D < NS:
            ld = loads(t + D)
            g = 0
            for x in ld:
                F[g].append(x)
                if x.kind in ("dma", "vld"):
                    g += 1
        body += pace(M, F, keep_order=True)
    body += L("s_nop 7", "s_nop 3")
    body += L("v_lshlrev_b32 v2, 4, v1", f"v_add_u32 v2, s{sKDST}, v2")
    for tl in range(6):
        for g in range(4):
            body += L(f"ds_write_b128 v2, {rn('a',ACC+16*tl+4*g,4)} offset:{tl*ST+g*SG}")
    body += L("v_and_b32 v3, 7, v1", f"v_mul_u32_u24 v3, {SG}, v3", "v_lshrrev_b32 v4, 3, v1", "v_lshl_add_u32 v3, v4, 4, v3",
              f"s_lshl_b32 s{sT}, s{sW}, 7", f"v_add_u32 v3, s{sT}, v3", f"v_add_u32 v5, {2*SW}, v3")
    body += L("v_mul_u32_u24 v4, 2304, v4", "v_and_b32 v6, 7, v1", "v_lshl_add_u32 v4, v6, 4, v4")
    for i in range(3):
        mt, r0, r1 = sT, sT + 1, sT + 2
        body += L(f"s_mul_i32 s{mt}, s{sM}, 3", f"s_add_u32 s{mt}, s{mt}, {i}",
                  f"s_lshl_b32 s{r0}, s{mt}, 5", f"s_lshr_b32 s{r1}, s{mt}, 2", f"s_lshl_b32 s{r1}, s{r1}, 4", f"s_add_u32 s{r0}, s{r0}, s{r1}",
                  f"s_lshl_b32 s{r1}, s{sW}, 3", f"s_add_u32 s{r0}, s{r0}, s{r1}",
                  f"s_sub_u32 s{r1}, s{mt}, 32", f"s_lshl_b32 s{r1}, s{r1}, 1", f"s_lshr_b32 s{sT+3}, s{sW}, 1", f"s_add_u32 s{r1}, s{r1}, s{sT+3}",
                  f"s_mul_i32 s{r1}, s{r1}, 144", f"s_add_u32 s{r1}, s{r1}, 128", f"s_and_b32 s{sT+3}, s{sW}, 1", f"s_lshl_b32 s{sT+3}, s{sT+3}, 3",
                  f"s_add_u32 s{r1}, s{r1}, s{sT+3}",
                  f"s_cmp_lt_u32 s{mt}, 32", f"s_cselect_b32 s{r0}, s{r0}, s{r1}",
                  f"s_mul_i32 s{r0}, s{r0}, 2304", f"s_mul_i32 s{r1}, s{sBR}, 1152", f"s_add_u32 s{r0}, s{r0}, s{r1}",
                  f"s_lshl_b32 s{r1}, s{sN}, 7", f"s_add_u32 s{40+i}, s{r0}, s{r1}")
    body += L("s_waitcnt lgkmcnt(0)", "s_barrier")
    for i in range(3):
        base = 16 + 32 * i
        for w in range(4):
            for h in range(2):
                body += L(f"ds_read_b128 {rn('v',base+8*w+4*h,4)}, v{3 if w < 2 else 5} offset:{(w&1)*SW + i*2*ST + h*512}")
        if i >= 1:
            pass
    for i in range(3):
        base = 16 + 32 * i
        for k in range(8):
            body += L(f"v_add_f32 v{base+k}, v{base+k}, v{base+8+k}", f"v_add_f32 v{base+16+k}, v{base+16+k}, v{base+24+k}")
        for k in range(8):
            body += L(f"v_add_f32 v{base+k}, v{base+k}, v{base+16+k}")
        for k in range(4):
            body += L(f"v_cvt_pk_bf16_f32 v{base+8+k}, v{base+2*k}, v{base+2*k+1}")
        body += L(f"buffer_store_dwordx4 {rn('v',base+8,4)}, v4, {srd(SRDC)}, s{40+i} offen")
    body, _ = add_lgkm_waits(body, maxn=True) if False else lg_safe(body)
    o += body
    o.append(I("L_k2_exit:", "label"))
    o += L("s_endpgm")
    errs = check_hazards(o, "k2")
    assert not errs, "\n".join(errs[:20])
    return o, 4 * SW

def lg_safe(body):
    return add_lgkm_waits(body)

def desc(name, vg, acc):
    return f""".amdhsa_kernel {name}
  .amdhsa_next_free_vgpr {vg}
  .amdhsa_next_free_sgpr 102
  .amdhsa_accum_offset {acc}
  .amdhsa_group_segment_fixed_size 0
  .amdhsa_kernarg_size 104
  .amdhsa_user_sgpr_count 2
  .amdhsa_user_sgpr_kernarg_segment_ptr 1
  .amdhsa_system_sgpr_workgroup_id_x 1
.end_amdhsa_kernel
"""

def build(cfg):
    cfg.code_pf = 3
    k1 = kernel1(cfg)
    k2, lds2 = kernel2(cfg)
    n1, n2 = NAME + "_kernel", "oproj_kernel"
    hdr = open("cdna_kernels/" + NAME + ".s.ref").read().split("; Override")[0]
    s = hdr
    s += f"; @launch kernel={n1} grid=(256,1,1) block=(256,1,1) lds={LDS1}\n"
    s += f"; @launch kernel={n2} grid=(216,1,1) block=(256,1,1) lds={lds2}\n"
    s += '.amdgcn_target "amdgcn-amd-amdhsa--gfx950"\n.text\n'
    for n, k in ((n1, k1), (n2, k2)):
        s += f".globl {n}\n.p2align 8\n.type {n},@function\n{n}:\n" + text(k) + "\n"
    s += '.section .rodata,"a"\n.p2align 6\n' + desc(n1, 512, 256) + ".p2align 6\n" + desc(n2, 512, 256)
    return s

if __name__ == "__main__":
    cfg = Cfg()
    out = "cdna_kernels/" + NAME + ".s"
    for a in sys.argv[1:]:
        if a.startswith("-o"):
            out = a[2:]
        else:
            k, v = a.split("=")
            setattr(cfg, k, type(getattr(Cfg, k))(int(v)))
    open(out, "w").write(build(cfg))
```

```python
import re

def regs(f, a, n=1):
    return [(f, a + i) for i in range(n)]

def rn(f, a, n=1):
    return f"{f}{a}" if n == 1 else f"{f}[{a}:{a+n-1}]"

class I:
    __slots__ = ("txt", "kind", "rd", "wr", "srcc", "tag", "at")
    def __init__(self, txt, kind, rd=(), wr=(), srcc=(), tag=None):
        self.txt, self.kind, self.rd, self.wr, self.srcc, self.tag = txt, kind, list(rd), list(wr), list(srcc), tag
        self.at = None
    def __repr__(self):
        return self.txt

_R = re.compile(r"\b([vas])(\d+)\b|\b([vas])\[(\d+):(\d+)\]")
def parse_ops(s):
    out = []
    for m in _R.finditer(s):
        if m.group(1):
            out.append([(m.group(1), int(m.group(2)))])
        else:
            out.append([(m.group(3), i) for i in range(int(m.group(4)), int(m.group(5)) + 1)])
    return out

def flat(l):
    return [x for y in l for x in y]

TRANS = ("v_exp_f32", "v_rcp_f32", "v_log_f32", "v_rsq_f32")

def ins(txt, tag=None):
    t = txt.strip()
    op = t.split()[0]
    rest = t[len(op):]
    if op.endswith(":"):
        return I(t, "label")
    if op.startswith("."):
        return I(t, "dir")
    parts = [p.strip() for p in rest.split(",")]
    ops = [flat(parse_ops(p)) for p in parts]
    special = lambda p: [("x", p)] if p in ("m0", "vcc", "exec", "scc") else []
    for i, p in enumerate(parts):
        w = p.split()[0] if p else ""
        ops[i] += special(w)
    if op.startswith("v_mfma"):
        return I(t, "mfma", rd=ops[1] + ops[2] + ops[3], wr=ops[0], srcc=ops[3], tag=tag)
    if op.startswith("ds_read"):
        return I(t, "dsr", rd=flat(ops[1:]), wr=ops[0], tag=tag)
    if op.startswith("ds_write"):
        return I(t, "dsw", rd=flat(ops), tag=tag)
    if op.startswith("buffer_load") or op.startswith("global_load"):
        if t.endswith(" lds"):
            return I(t, "dma", rd=flat(ops) + [("x", "m0")], tag=tag)
        return I(t, "vld", rd=flat(ops[1:]), wr=ops[0], tag=tag)
    if op.startswith("buffer_store") or op.startswith("global_store"):
        return I(t, "vst", rd=flat(ops), tag=tag)
    if op.startswith("buffer_atomic"):
        return I(t, "vst", rd=flat(ops), wr=ops[0] if " sc0" in t else [], tag=tag)
    if op in ("s_sleep", "s_setprio"):
        return I(t, "salu", tag=tag)
    if op == "s_waitcnt":
        return I(t, "wait", tag=tag)
    if op == "s_barrier":
        return I(t, "bar", tag=tag)
    if op == "s_nop":
        return I(t, "nop", tag=tag)
    if op.startswith("s_cbranch") or op in ("s_branch", "s_endpgm", "s_setpc_b64"):
        return I(t, "branch", tag=tag)
    if op.startswith("s_load") or op.startswith("s_memtime") or op.startswith("s_buffer_load"):
        return I(t, "smem", rd=flat(ops[1:]), wr=ops[0], tag=tag)
    if op.startswith("s_cmp"):
        return I(t, "salu", rd=flat(ops), wr=[("x", "scc")], tag=tag)
    if op.startswith("s_"):
        return I(t, "salu", rd=flat(ops[1:]), wr=ops[0], tag=tag)
    if op.startswith("v_permlane32_swap") or op.startswith("v_permlane16_swap"):
        return I(t, "perm", rd=flat(ops), wr=flat(ops), tag=tag)
    if op.startswith("v_readfirstlane") or op.startswith("v_readlane"):
        return I(t, "rfl", rd=flat(ops[1:]), wr=ops[0], tag=tag)
    if op.startswith("v_cmp"):
        return I(t, "valu", rd=flat(ops[1:]), wr=ops[0], tag=tag)
    if op.startswith("v_"):
        k = "trans" if op.replace("_e32", "").replace("_e64", "") in TRANS else "valu"
        rd = flat(ops[1:])
        if op.startswith("v_fmac") or op.startswith("v_cndmask") and len(parts) == 3:
            rd = rd + (ops[0] if op.startswith("v_fmac") else [("x", "vcc")])
        return I(t, k, rd=rd, wr=ops[0], tag=tag)
    raise ValueError("unknown instruction: " + t)

def L(*txts):
    out = []
    for t in txts:
        for line in t.split("\n"):
            line = line.split(";")[0].strip()
            if line:
                out.append(ins(line))
    return out

ORDER = {"wait": 0, "bar": 1, "salu": 2, "nop": 2, "dsr": 3, "dsw": 3, "dma": 4, "vld": 4, "vst": 4}

def pace(mfmas, fill, keep_order=False):
    out = []
    for g, m in enumerate(mfmas):
        out.append(m)
        f = list(fill.get(g, []))
        if not keep_order:
            f.sort(key=lambda x: ORDER.get(x.kind, 5))
        out.extend(f)
    return out

COST = {"wait": 4, "bar": 4, "salu": 4, "nop": 4, "dsr": 4, "dsw": 4, "dma": 12, "vld": 12, "vst": 12,
        "valu": 4, "trans": 8, "perm": 4, "rfl": 4, "branch": 4, "smem": 4, "label": 0, "dir": 0}

def gap_costs(stream):
    res, cur, first, seen_valu = [], None, True, False
    for x in stream:
        if x.kind == "mfma":
            if cur is not None:
                res.append(cur)
            cur, first, seen_valu = 0, True, False
            continue
        if cur is None or x.kind in ("label", "dir"):
            continue
        c = COST[x.kind]
        if first and x.kind in ("wait", "salu", "nop", "bar"):
            c = 0
        if seen_valu and x.kind in ("dsr", "dsw"):
            c += 8
        if seen_valu and x.kind in ("dma", "vld", "vst"):
            c += 4
        if x.kind in ("valu", "trans", "perm"):
            seen_valu = True
        first = False
        cur += c
    if cur is not None:
        res.append(cur)
    return res

_LG = re.compile(r"lgkmcnt\((\d+)\)")

def add_lgkm_waits(stream, init=None, eager=3, hoist=True):
    out = []
    q = [(set(d), -100) for d in (init or [])]
    pos_of = []
    pos = [-1] * len(q)
    nm = 0
    last_mfma = -1
    for x in stream:
        if x.kind == "wait":
            m = _LG.search(x.txt)
            if m:
                n = int(m.group(1))
                while len(q) > n:
                    q.pop(0); pos.pop(0)
        touched = set(x.rd) | set(x.wr)
        need = -1
        for i, (d, _) in enumerate(q):
            if d & touched:
                need = i
        if need >= 0:
            at = len(out)
            if hoist and x.kind == "mfma" and last_mfma >= 0 and pos[need] < last_mfma:
                at = last_mfma + 1
            cur_gap = nm - (1 if at <= last_mfma + 1 and at != len(out) else 0)
            k = need
            while k + 1 < len(q) and pos[k + 1] < at and q[k + 1][1] <= cur_gap - eager:
                k += 1
            issued_before = sum(1 for p in pos if p < at)
            n = issued_before - (k + 1)
            if n > 15:
                k += n - 15
                n = 15
            assert 0 <= n <= 15, n
            w = ins(f"s_waitcnt lgkmcnt({n})")
            if at < len(out) and out[at].kind == "wait" and "lgkmcnt" not in out[at].txt:
                out[at] = ins(out[at].txt + f" lgkmcnt({n})")
            else:
                out.insert(at, w)
                pos = [p + 1 if p >= at else p for p in pos]
                if last_mfma >= at:
                    last_mfma += 1
            q = q[k + 1:]; pos = pos[k + 1:]
        out.append(x)
        if x.kind in ("dsr", "dsw"):
            q.append((set(x.wr), nm)); pos.append(len(out) - 1)
            assert len(q) <= 15 or True
        if x.kind == "smem":
            raise ValueError("smem inside auto-wait region")
        if x.kind == "mfma":
            last_mfma = len(out) - 1
            nm += 1
    return out, [d for d, _ in q]

def states(x):
    if x.kind == "nop":
        return int(x.txt.split()[1], 0) + 1
    if x.kind in ("label", "dir"):
        return 0
    return 1

def check_hazards(stream, name=""):
    errs = []
    n = len(stream)
    for i, p in enumerate(stream):
        rules = []
        if p.kind in ("valu", "trans", "perm"):
            vw = {r for r in p.wr if r[0] in "va"}
            sw = {r for r in p.wr if r[0] == "s" or r == ("x", "vcc")}
            if vw:
                rules += [(2, lambda c, vw=vw: c.kind == "mfma" and vw & set(c.rd), "valu->mfma"),
                          (2, lambda c, vw=vw: c.kind == "perm" and vw & set(c.rd), "valu->perm"),
                          (1, lambda c, vw=vw: c.kind == "rfl" and vw & set(c.rd), "valu->rfl")]
                if p.kind == "trans":
                    rules.append((1, lambda c, vw=vw: c.kind in ("valu", "perm") and vw & set(c.rd), "trans->valu"))
            if sw:
                rules += [(2, lambda c, sw=sw: c.kind in ("valu", "trans") and sw & set(c.rd), "valu sgpr->valu"),
                          (5, lambda c, sw=sw: c.kind in ("dma", "vld", "vst") and sw & set(c.rd), "valu sgpr->vmem")]
        if p.kind == "rfl":
            sw = set(p.wr)
            rules += [(2, lambda c, sw=sw: c.kind in ("valu", "trans") and sw & set(c.rd), "rfl->valu"),
                      (5, lambda c, sw=sw: c.kind in ("dma", "vld", "vst") and sw & set(c.rd), "rfl->vmem")]
        if p.kind == "mfma":
            d = set(p.wr)
            big = "32x32" in p.txt
            w = 12 if big else 8
            def mm(c, d=d, p=p):
                if c.kind != "mfma":
                    return False
                ab = set(c.rd) - set(c.srcc)
                if d & ab:
                    return True
                return False
            def mc(c, d=d, p=p):
                return c.kind == "mfma" and (d & set(c.srcc)) and set(c.srcc) != d
            rules += [(w, lambda c, d=d: c.kind in ("valu", "trans", "perm", "rfl", "dsr", "dsw", "vld", "vst", "dma")
                       and (d & (set(c.rd) | set(c.wr))), "mfma D->other"),
                      (w, mm, "mfma D->mfma AB"), (w - 2, mc, "mfma D->mfma C overlap")]
            sc = set(p.srcc)
            if sc:
                rules.append((7 if big else 3, lambda c, sc=sc: c.kind in ("valu", "trans", "perm") and sc & set(c.wr), "mfma C war"))
        if p.kind == "salu" and ("x", "m0") in p.wr:
            rules.append((1, lambda c: c.kind == "dma", "m0->dma"))
        if p.kind == "vst" and ("x3" in p.txt.split()[0] or "x4" in p.txt.split()[0]):
            data = set(flat(parse_ops(p.txt.split(",")[0 if p.txt.startswith("buffer") else 1])))
            rules.append((2, lambda c, data=data: set(c.wr) & data, "wide store war"))
        if p.kind in ("valu",) and ("x", "exec") in p.wr:
            rules.append((4, lambda c: c.kind in ("mfma", "perm", "rfl"), "exec->mfma"))
        for dist, pred, what in rules:
            s = 0
            j = i + 1
            while j < n and s < dist:
                c = stream[j]
                if pred(c):
                    errs.append(f"{name}: {what}: [{i}] {p.txt}  ->  [{j}] {c.txt}  (have {s}, need {dist})")
                    break
                s += states(c)
                j += 1
    return errs

def text(stream):
    return "\n".join((x.txt if x.kind in ("label",) else "    " + x.txt) for x in stream)

MEMK = ("wait", "bar", "dsr", "dsw", "dma", "vld", "vst")

class Bundle(I):
    __slots__ = ("parts",)
    def __init__(self, parts, kind):
        rd = [r for p in parts for r in p.rd]; wr = [r for p in parts for r in p.wr]
        I.__init__(self, "bundle", kind, rd, wr)
        self.parts = parts

def cost_of(x):
    if isinstance(x, Bundle):
        return sum(COST[p.kind] for p in x.parts)
    return COST[x.kind]

def listsched(prog, budget=24, mlat=3, dlat=3, tail_budget=None):
    n = len(prog)
    preds = [set() for _ in range(n)]
    lastw, readers = {}, {}
    last_mem = last_salu = None
    for j, x in enumerate(prog):
        for r in x.rd:
            if r in lastw: preds[j].add(lastw[r])
        for r in x.wr:
            if r in lastw: preds[j].add(lastw[r])
            for i in readers.get(r, ()): preds[j].add(i)
        if x.kind in MEMK:
            if last_mem is not None: preds[j].add(last_mem)
            last_mem = j
        if x.kind == "salu":
            if last_salu is not None: preds[j].add(last_salu)
            last_salu = j
        for r in x.rd: readers.setdefault(r, []).append(j)
        for r in x.wr:
            lastw[r] = j; readers[r] = []
        preds[j].discard(j)
    gap = [None] * n
    mf = [j for j in range(n) if prog[j].kind == "mfma"]
    others = [j for j in range(n) if prog[j].kind != "mfma"]
    out = []
    def force(j, g, lst):
        for p in sorted(preds[j]):
            if gap[p] is None:
                assert prog[p].kind != "mfma", ("mfma order conflict", prog[p].txt, prog[j].txt)
                force(p, g, lst); gap[p] = g; lst.append(p)
    def ready(j, g):
        x = prog[j]
        for p in preds[j]:
            if gap[p] is None: return False
            y = prog[p]
            raw = set(y.wr) & (set(x.rd) | set(x.wr))
            if y.kind == "mfma" and raw and g < gap[p] + mlat: return False
            if y.kind == "mfma" and (set(y.srcc) & set(x.wr)) and g < gap[p] + 2: return False
            if y.kind == "dsr" and raw and g < gap[p] + dlat: return False
            if gap[p] == g:
                if y.kind == "trans" and raw: return False
                if x.kind == "perm" and raw: return False
                if x.kind in MEMK and y.kind not in MEMK and y.kind != "salu": return False
                if x.kind == "dma" and y.kind == "salu" and ("x", "m0") in raw: return False
                if x.kind == "salu" and y.kind not in ("salu", "wait", "bar"): pass
        return True
    for gi in range(-1, len(mf)):
        if gi >= 0:
            pre = []
            force(mf[gi], gi - 1, pre)
            out += [prog[p] for p in pre]
            gap[mf[gi]] = gi
            out.append(prog[mf[gi]])
        if gi == -1:
            continue
        if gi == len(mf) - 1:
            break
        used, cur, first = 0, [], True
        for j in others:
            if gap[j] is not None: continue
            if not ready(j, gi): continue
            c = cost_of(prog[j])
            if prog[j].kind in ("salu", "wait", "bar") and first:
                c = 0; first = False
            if used + c > budget:
                if used >= budget - 3: break
                continue
            used += c; gap[j] = gi; cur.append(j)
        key = {j: ORDER.get(prog[j].kind, 5) for j in cur}
        for j in cur:
            for p in preds[j]:
                if p in key and key[p] > key[j]: key[j] = key[p]
        cur.sort(key=lambda j: (key[j], j))
        out += [prog[j] for j in cur]
    out += [prog[j] for j in others if gap[j] is None]
    res = []
    for x in out:
        res += x.parts if isinstance(x, Bundle) else [x]
    return res

_HZ = re.compile(r"\[(\d+)\] .*->  \[(\d+)\] .*\(have (\d+), need (\d+)\)")
def fix_hazards(stream):
    stream = list(stream)
    for _ in range(2000):
        errs = check_hazards(stream)
        if not errs:
            return stream
        m = _HZ.search(errs[0])
        j, have, need = int(m.group(2)), int(m.group(3)), int(m.group(4))
        stream.insert(j, ins(f"s_nop {need - have - 1}"))
    raise RuntimeError("hazard fixing did not converge")


C16 = dict(COST); C16.update({"dma": 8, "vld": 8, "vst": 8, "dsw": 8})
SCC_W = ("s_add", "s_sub", "s_and", "s_or", "s_xor", "s_lsh", "s_ash", "s_bfe", "s_cmp", "s_bit", "s_min", "s_max", "s_not", "s_andn2")

def sched(prog, budget=8, dlat=5, cost=C16):
    n = len(prog)
    bud = budget if callable(budget) else (lambda g: budget)
    preds = [set() for _ in range(n)]
    lastw, readers = {}, {}
    last = {"lds": None, "vm": None, "salu": None}
    for j, x in enumerate(prog):
        for r in x.rd:
            if r in lastw: preds[j].add(lastw[r])
        for r in x.wr:
            if r in lastw: preds[j].add(lastw[r])
            for i in readers.get(r, ()): preds[j].add(i)
        ch = {"wait": ("lds", "vm"), "bar": ("lds", "vm"), "dsr": ("lds",), "dsw": ("lds",), "dma": ("vm",), "vld": ("vm",),
              "vst": ("vm",), "salu": ("salu",)}.get(x.kind, ())
        for c in ch:
            if last[c] is not None: preds[j].add(last[c])
            last[c] = j
        for r in x.rd: readers.setdefault(r, []).append(j)
        for r in x.wr:
            lastw[r] = j; readers[r] = []
        preds[j].discard(j)
    gap = [None] * n
    pos = [None] * n
    mf = [j for j in range(n) if prog[j].kind == "mfma"]
    others = [j for j in range(n) if prog[j].kind != "mfma"]
    out = []
    def emit(j, g):
        gap[j] = g; pos[j] = len(out); out.append(j)
    def anc(j, acc):
        for p in preds[j]:
            if gap[p] is None and p not in acc:
                assert prog[p].kind != "mfma", ("mfma order conflict", prog[p].txt, prog[j].txt)
                acc.add(p); anc(p, acc)
    VAL = ("valu", "trans", "perm")
    def ready(j, g):
        x = prog[j]
        if x.at is not None and g < x.at: return False
        for p in preds[j]:
            if gap[p] is None: return False
            y = prog[p]
            d = len(out) - pos[p] - 1
            raw = set(y.wr) & (set(x.rd) | set(x.wr))
            if y.kind == "mfma":
                big = "32x32" in y.txt
                if raw and d < (12 if big else 8): return False
                if (set(y.srcc) & set(x.wr)) and x.kind in VAL and d < (7 if big else 3): return False
            if y.kind == "dsr" and raw and g < gap[p] + dlat: return False
            if y.kind == "trans" and raw and d < 1: return False
            if y.kind in VAL and x.kind == "perm" and raw and d < 2: return False
            if y.kind in VAL and x.kind == "rfl" and raw and d < 1: return False
            if x.kind == "dma" and ("x", "m0") in raw and d < 1: return False
            if y.kind == "vst" and (set(y.rd) & set(x.wr)) and d < 2: return False
            if x.kind == "wait" and y.kind in ("dsr", "dsw") and "lgkm" in x.txt and g < gap[p] + dlat: return False
        return True
    forced = 0
    for gi, m in enumerate(mf):
        acc = set(); anc(m, acc)
        for p in sorted(acc):
            emit(p, gi - 1); forced += 1
        emit(m, gi)
        if gi == len(mf) - 1:
            break
        used, first, b = 0, True, bud(gi)
        for kinds in (("wait", "bar", "salu", "dsr", "dsw", "dma", "vld", "vst"), None):
            prog_made = True
            while prog_made:
                prog_made = False
                for j in others:
                    if gap[j] is not None: continue
                    k = prog[j].kind
                    if kinds is not None and k not in kinds: continue
                    if kinds is None and k in ("dsr", "dsw", "dma", "vld", "vst", "wait", "bar"): continue
                    c = cost[k]
                    if first and k in ("salu", "wait", "bar"): c = 0
                    if used + c > b: continue
                    if not ready(j, gi): continue
                    used += c; first = False; emit(j, gi); prog_made = True
                    break
    for j in others:
        if gap[j] is None: emit(j, len(mf))
    return [prog[j] for j in out]

def est_cycles(stream, mc=16, cost=C16):
    tot, cur, first = 0, None, True
    for x in stream:
        if x.kind in ("label", "dir"): continue
        if x.kind == "mfma":
            if cur is not None: tot += max(mc, cur)
            cur, first = 8, True
            continue
        c = cost[x.kind] if x.kind != "nop" else 4 * states(x)
        if first and x.kind in ("wait", "salu", "bar"): c = 0
        first = False
        if cur is None: tot += c
        else: cur += c
    return tot + (cur or 0)
```

```python
import sys, math, struct
from asmlib import *

NAME = "concat_heads__gqa_block_cached__gqa_block_cached__near_ridge"

class Cfg:
    stamps = 0
    force_fallback = 0
    spin = 4000
    psleep = 4
    pol_q = 1
    pol_kv = 1
    init_items = 3
    rate = 2
    kv0 = 2
    kvd = 2
    s0 = 38
    nadd = 0
    wo_touch = 1
    od = 5
    tb = 8

POL = ["", " nt", " sc1", " sc0 sc1"]

def f32(x):
    return "0x%08x" % struct.unpack("<I", struct.pack("<f", x))[0]

QSLOT = 51200
Q9X, DUMMY = 153600, 161792
VRB = 65536
O9X = 131072
MX, FLG = 0, 2048
LDS = 163840
KA = [0, 1]
VA = [[2, 3], [4, 5]]
VD = [6, 7]
LSV = [8, 9, 10, 11, 12]
T0 = 13
QF = [32 + 16 * t for t in range(5)]
NM = [112 + 4 * t for t in range(5)]
SR = [[132 + 8 * t for t in range(5)], [172 + 8 * t for t in range(4)]]
OA = [32 * t for t in range(5)]
LA = [160 + 4 * t for t in range(5)]
ONES = 180
KF, VF = 192, 224
sW, sBR, sHKV, sB = 3, 4, 5, 6
sS = 7
SRDX, SRDWQ, SRDK, SRDV, SRDO, SRDT = 20, 24, 28, 32, 36, 40
sKM, sVM, sKO, sVO, sCNT, sPASS = 44, 45, 46, 47, 48, 49
sSC = 50
sT = 52
sX5 = 60
sSO = 63
sSTAMP = 64
sXM, sWM = 80, 81
sMASK, sTILE, sMQ, sNEED = 82, 83, 84, 85
sOLD = 86
sOUT = 88

def srd(n): return f"s[{n}:{n+3}]"

def mfma(d, df, a, af, b, bf, c=None):
    cs = "0" if c is None else rn(df, c, 4)
    return ins(f"v_mfma_f32_16x16x32_bf16 {rn(df,d,4)}, {rn(af,a,4)}, {rn(bf,b,4)}, {cs}")

def lane_id(v):
    return L(f"v_mbcnt_lo_u32_b32 v{v}, -1, 0", f"v_mbcnt_hi_u32_b32 v{v}, -1, v{v}")

def stamp(cfg, i):
    return [I(f"s_memtime s[{sSTAMP+2*i}:{sSTAMP+2*i+1}]", "salu")] if cfg.stamps else []

def rstamp(cfg, i):
    return [I(f"s_memrealtime s[{sSTAMP+2*i}:{sSTAMP+2*i+1}]", "salu")] if cfg.stamps else []

def at(lst, g):
    for x in lst: x.at = g
    return lst

def lab(n): return [I(n + ":", "label")]

def dump_stamps(cfg, off):
    if not cfg.stamps: return []
    o = L("s_waitcnt lgkmcnt(0)",
          f"s_lshl_b32 s{sT}, s2, 2", f"s_add_u32 s{sT}, s{sT}, s{sW}", f"s_lshl_b32 s{sT}, s{sT}, 6",
          f"s_add_u32 s{SRDT}, s16, {off}", f"s_addc_u32 s{SRDT+1}, s17, 0", f"s_mov_b32 s{SRDT+2}, 0x10000",
          f"s_mov_b32 s{SRDT+3}, 0x00020000", "v_mov_b32 v28, 0")
    for i in range(8):
        o += L(f"v_mov_b32 v30, s{sSTAMP+2*i}", f"v_mov_b32 v31, s{sSTAMP+2*i+1}",
               f"buffer_store_dwordx2 v[30:31], v28, {srd(SRDT)}, s{sT} offen offset:{8*i}")
    return o

def attn_addr_init():
    l, a, b, c = T0, T0 + 1, T0 + 2, T0 + 3
    o = lane_id(l)
    o += L(f"v_bfe_u32 v{a}, v{l}, 2, 2", f"v_lshlrev_b32 v{a}, 10, v{a}",
           f"v_and_b32 v{b}, 3, v{l}", f"v_lshl_add_u32 v{a}, v{b}, 6, v{a}",
           f"v_lshrrev_b32 v{c}, 4, v{l}", f"v_bfe_u32 v{b}, v{l}, 2, 1", f"v_lshlrev_b32 v{b}, 1, v{b}",
           f"v_xor_b32 v{b}, v{b}, v{c}", f"s_lshl_b32 s{sT}, s{sS}, 1", f"v_xor_b32 v{b}, s{sT}, v{b}",
           f"v_lshl_add_u32 v{a}, v{b}, 4, v{a}",
           f"s_lshl_b32 s{sT+1}, s{sS}, 13", f"v_add_u32 v{KA[0]}, s{sT+1}, v{a}", f"v_xor_b32 v{KA[1]}, 0x2000, v{KA[0]}")
    o += L(f"v_lshlrev_b32 v{a}, 10, v{c}", f"v_bfe_u32 v{b}, v{l}, 2, 2", f"v_lshl_add_u32 v{a}, v{b}, 6, v{a}",
           f"v_and_b32 v{b}, 3, v{l}", f"v_lshl_add_u32 v{a}, v{b}, 3, v{a}",
           f"v_and_b32 v{b}, 1, v{c}", f"v_lshl_add_u32 v{a}, v{b}, 5, v{a}",
           f"s_add_u32 s{sT+1}, s{sT+1}, {VRB}", f"v_add_u32 v{VA[0][0]}, s{sT+1}, v{a}",
           f"v_xor_b32 v{VA[0][1]}, 32, v{VA[0][0]}", f"v_xor_b32 v{VA[1][0]}, 0x2000, v{VA[0][0]}",
           f"v_xor_b32 v{VA[1][1]}, 32, v{VA[1][0]}")
    o += L(f"v_and_b32 v{a}, 3, v{l}", f"v_lshlrev_b32 v{a}, 4, v{a}", f"v_bfe_u32 v{b}, v{l}, 2, 2",
           f"v_lshl_add_u32 v{a}, v{b}, 8, v{a}", f"v_lshl_add_u32 v{VD[0]}, v{c}, 6, v{a}", f"v_xor_b32 v{VD[1]}, 32, v{VD[0]}")
    return o

def kv_dma_abs(cfg, which, hb):
    base = (VRB if which == "V" else 0) + (hb & 3) * 16384
    r = L(f"s_add_u32 m0, s{sWM}, {base}", f"s_add_u32 s{sSO}, s{sWM}, {hb*16384}")
    for c in range(4):
        r.append(ins(f"buffer_load_dwordx4 v{VD[c&1]}, {srd(SRDV if which=='V' else SRDK)}, s{sSO} offen offset:{c*1024}{POL[cfg.pol_kv]} lds", tag=(which, hb)))
    return r

def kread(p, hbpar, f, dst=KF):
    return ins(f"ds_read_b128 {rn('a',dst+4*f,4)}, v{KA[p]} offset:{hbpar*16384 + (f>>2)*4096 + (f&3)*256}")

def vread(p, hbpar, dt, e):
    return ins(f"ds_read_b64_tr_b16 {rn('a',VF+4*dt+2*e,2)}, v{VA[p][dt&1]} offset:{hbpar*16384 + e*4096 + (dt>>1)*256}")

def qk(p, t, f, zero=False, src=KF):
    kt, u = f >> 2, f & 3
    d = SR[p][t] + 4 * kt
    c = d if u else (None if zero else NM[t])
    return mfma(d, "v", src + 4 * f, "a", QF[t] + 4 * u, "v", c)

def pv(p, t, dt, zero=False):
    d = OA[t] + 4 * dt
    return mfma(d, "a", VF + 4 * dt, "a", SR[p][t], "v", None if zero else d)

def lm(p, t, zero=False):
    return mfma(LA[t], "a", ONES, "a", SR[p][t], "v", None if zero else LA[t])

def use_add(cfg, p, t):
    return (p == 1 and t < cfg.nadd) or (p == 0 and t < cfg.nadd - 4)

def elems(p):
    el = [(p, t, 4 * kt + r) for kt in range(2) for t in range(4) for r in range(4)]
    if p == 0: el += [(0, 4, r) for r in range(8)]
    return el

def sm_ops(cfg, p, t, r):
    s = SR[p][t]
    ex = ins(f"v_exp_f32 v{s+r}, v{s+r}")
    post = []
    if use_add(cfg, p, t):
        post.append(ins(f"v_add_f32 v{LSV[t]}, v{LSV[t]}, v{s+r}"))
    if r & 1:
        post.append(ins(f"v_cvt_pk_bf16_f32 v{s+(r>>1)}, v{s+r-1}, v{s+r}"))
    return ex, post

def phases(cfg, first=False, ksrc=KF):
    A = [qk(1, t, f, src=ksrc) for f in range(8) for t in range(4)]
    B = [pv(0, t, dt, first) for dt in range(8) for t in range(4)]
    B += [lm(0, t, first) for t in range(4) if not use_add(cfg, 0, t)]
    B += [pv(0, 4, dt, first) for dt in range(8)] + [lm(0, 4, first)]
    C = [qk(0, t, f) for f in range(8) for t in range(4)] + [qk(0, 4, f) for f in range(8)]
    D = [pv(1, t, dt) for dt in range(8) for t in range(4)]
    D += [lm(1, t) for t in range(4) if not use_add(cfg, 1, t)]
    return A, B, C, D

def iter_plan(cfg, par):
    A, B, C, D = phases(cfg)
    M = A + B + C + D
    N = len(M)
    b0, c0, d0 = len(A), len(A) + len(B), len(A) + len(B) + len(C)
    F = [[] for _ in range(N)]
    cap = [8] * N
    def place(x, g, hi, cost=None):
        c = C16[x.kind] if cost is None else cost
        while cap[g % N] < c:
            g += 1
        assert g <= hi, (x.txt, g, hi)
        cap[g % N] -= c
        F[g % N].append(x)
        return g
    gb = b0 - 1
    el = elems(1) + elems(0)
    eg = [cfg.s0 + (e * N) // 72 for e in range(72)]
    wrapped = []
    posts = []
    for e, (p, t, r) in enumerate(el):
        ex, post = sm_ops(cfg, p, t, r)
        g = place(ex, eg[e], eg[e])
        if g >= N: wrapped.append(ex.txt)
        posts.append((g, p, t, post))
    while cap[gb] < 8: gb -= 1
    F[gb] += L("s_waitcnt vmcnt(12)", "s_barrier"); cap[gb] -= 4
    span = N - (gb + 3)
    for i in range(8):
        which = "V" if i < 4 else "K"
        c = i & 3
        d = ins(f"buffer_load_dwordx4 v{VD[c&1]}, {srd(SRDV if which=='V' else SRDK)}, s{sVO if which=='V' else sKO} offen offset:{c*1024}{POL[cfg.pol_kv]} lds")
        g = place(d, gb + 3 + (i * span) // 8, N - 2)
        if c == 0:
            F[g - 1].append(ins(f"s_mov_b32 m0, s{sVM if which=='V' else sKM}"))
        if c == 3:
            m, o = (sVM, sVO) if which == "V" else (sKM, sKO)
            F[g + 1].append(ins(f"s_add_u32 s{o}, s{o}, 16384"))
            F[g + 2].append(ins(f"s_xor_b32 s{m}, s{m}, {16384 if ((par + (3 if which=='V' else 4)) & 1) == 0 else 49152}"))
    last = {}
    for i in range(16):
        dt, e = i >> 1, i & 1
        last["v0"] = place(vread(0, par, dt, e), (i * 30) // 16, b0 + 4 * dt - 5)
        last["v1"] = place(vread(1, par, dt, e), c0 + (i * 34) // 16, d0 + 4 * dt - 5)
    for f in range(8):
        last["k0"] = place(kread(0, par ^ 1, f), gb + 2 + 4 * f, c0 + 4 * f - 5)
        last["k1"] = place(kread(1, par ^ 1, f), d0 + 1 + 4 * f, N - 1)
    for g, p, t, post in posts:
        hi = (d0 - 2) if p == 1 else (N + b0 - 2 if t < 4 else N + c0 - 11)
        for x in post:
            g2 = place(x, g + 1, hi)
            if g2 >= N: wrapped.append(x.txt)
    tog = lambda v: ins(f"v_xor_b32 v{v}, 0x8000, v{v}")
    if par == 1:
        for k, regs_ in (("v0", VA[0]), ("v1", VA[1])):
            for v in regs_: place(tog(v), last[k] + 1, N - 1)
    else:
        place(tog(KA[0]), last["k0"] + 1, N - 1)
    if par == 1:
        place(tog(KA[1]), 40, d0)
    for g in range(N):
        F[g].sort(key=lambda x: (ORDER.get(x.kind, 5), 1 if x.kind == "trans" else 0))
    return M, F, wrapped, eg

def mref(t):
    s = SR[0][t]; a, b = T0 + 6 + 2 * (t & 1), T0 + 7 + 2 * (t & 1)
    r = L(f"v_max3_f32 v{a}, v{s}, v{s+1}, v{s+2}", f"v_max3_f32 v{b}, v{s+3}, v{s+4}, v{s+5}",
          f"v_max3_f32 v{a}, v{a}, v{s+6}, v{s+7}", f"v_max_f32 v{a}, v{a}, v{b}", f"v_mov_b32 v{b}, v{a}",
          f"v_permlane32_swap_b32 v{a}, v{b}", f"v_max_f32 v{a}, v{a}, v{b}", f"v_mov_b32 v{b}, v{a}",
          f"v_permlane16_swap_b32 v{a}, v{b}")
    r += L(*[f"v_min_f32_e64 v{NM[t]+i}, -v{a}, -v{b}" for i in range(4)])
    r += L(*[f"v_add_f32 v{s+i}, v{s+i}, v{NM[t]}" for i in range(8)])
    return r

class VLog:
    def __init__(self): self.l = []
    def note(self, lst):
        for x in lst:
            if x.kind in ("dma", "vld", "vst"): self.l.append(x.tag)
        return lst
    def n(self, need):
        last = max(i for i, tg in enumerate(self.l) if tg in need)
        return min(63, len(self.l) - 1 - last)

def front(cfg, wrapped):
    WA = [T0, T0 + 1]; XA, X9 = T0 + 2, T0 + 3
    DW = [T0 + 4, T0 + 5]
    Q9W, Q9R = T0 + 10, T0 + 11
    DUM = T0 + 12
    WV = [80 + i for i in range(4)]
    XV = [84 + i for i in range(5)]
    l, a, b, c = 90, 91, 92, 93
    PF = {("K", 0): 104, ("K", 1): 120, ("K", 2): 136, ("V", 0): 152, ("V", 1): 168}
    log = VLog()
    o = lane_id(l)
    o += L(f"v_and_b32 v{a}, 3, v{l}", f"v_lshlrev_b32 v{a}, 4, v{a}",
           f"v_bfe_u32 v{b}, v{l}, 2, 2", f"v_lshl_add_u32 v{a}, v{b}, 13, v{a}",
           f"v_lshrrev_b32 v{b}, 4, v{l}", f"v_lshl_add_u32 v{a}, v{b}, 6, v{a}",
           f"s_lshr_b32 s{sT}, s{sW}, 1", f"s_lshl_b32 s{sT}, s{sT}, 8", f"s_lshl_b32 s{sT+1}, s{sS}, 17", f"s_add_u32 s{sT}, s{sT}, s{sT+1}",
           f"v_add_u32 v{WV[0]}, s{sT}, v{a}", f"v_add_u32 v{WV[1]}, {32768-1024}, v{WV[0]}",
           f"v_xor_b32 v{a}, 32, v{WV[0]}", f"v_add_u32 v{WV[2]}, {2*(32768-1024)}, v{a}", f"v_add_u32 v{WV[3]}, {3*(32768-1024)}, v{a}")
    o += L(f"v_bfe_u32 v{a}, v{l}, 2, 3", f"v_mul_u32_u24 v{a}, 1152, v{a}",
           f"v_lshrrev_b32 v{b}, 5, v{l}", f"v_lshl_add_u32 v{a}, v{b}, 6, v{a}",
           f"v_bfe_u32 v{b}, v{l}, 4, 1", f"v_lshlrev_b32 v{b}, 1, v{b}", f"v_and_b32 v{c}, 3, v{l}", f"v_xor_b32 v{b}, v{b}, v{c}",
           f"v_lshl_add_u32 v{a}, v{b}, 4, v{a}",
           f"s_mul_i32 s{sT}, s{sW}, {4*9216}", f"v_add_u32 v{XV[0]}, s{sT}, v{a}")
    for i in range(1, 4):
        o += L(f"v_add_u32 v{XV[i]}, {i*(9216-1024)}, v{XV[0]}")
    o += L(f"s_mul_i32 s{sT}, s{sW}, 9216", f"s_add_u32 s{sT}, s{sT}, {16*9216}", f"v_add_u32 v{XV[4]}, s{sT}, v{a}")
    o += L(f"s_lshl_b32 s{sWM}, s{sW}, 12", f"s_lshl_b32 s{sT}, s{sW}, 10")
    o += L(f"s_mov_b32 s{sT+1}, {DUMMY - 2048}")
    for j in range(3):
        o += L(f"s_cmp_lt_u32 s{sW}, 2", f"s_cselect_b32 s{sX5+j}, {j*QSLOT + 32768 + 16384}, s{sT+1}",
               f"s_add_u32 s{sX5+j}, s{sX5+j}, s{sT}")
    o += srd_setup()
    def wq_dma(t):
        r = L(f"s_add_u32 m0, s{sWM}, {((t>>1)%3)*QSLOT + (t&1)*16384}", f"s_mov_b32 s{sSO}, {t*262144}")
        r += [ins(f"buffer_load_dwordx4 v{WV[i]}, {srd(SRDWQ)}, s{sSO} offen offset:{i*1024}{POL[cfg.pol_q]} lds", tag=("wq", t)) for i in range(4)]
        return r
    def x_dma(ch):
        r = L(f"s_add_u32 m0, s{sWM}, {(ch%3)*QSLOT + 32768}", f"s_movk_i32 s{sSO}, {ch*128}")
        r += [ins(f"buffer_load_dwordx4 v{XV[i]}, {srd(SRDX)}, s{sSO} offen offset:{i*1024}{POL[cfg.pol_q]} lds", tag=("x", ch)) for i in range(4)]
        r += L(f"s_mov_b32 m0, s{sX5 + ch%3}")
        r += [ins(f"buffer_load_dwordx4 v{XV[4]}, {srd(SRDX)}, s{sSO} offen{POL[cfg.pol_q]} lds", tag=("x", ch))]
        return r
    def kv_reg(which, hb):
        r = L(f"s_add_u32 s{sSO}, s{sWM}, {hb*16384}")
        r += [ins(f"buffer_load_dwordx4 {rn('a',PF[(which,hb)]+4*i,4)}, v{VD[i&1]}, {srd(SRDV if which=='V' else SRDK)}, s{sSO} offen offset:{i*1024}{POL[cfg.pol_kv]}", tag=(which, hb)) for i in range(4)]
        return r
    def drain(which, hb):
        r = L(f"s_waitcnt vmcnt({log.n([(which, hb)])})")
        r += [ins(f"ds_write_b128 v{DW[which=='V']}, {rn('a',PF[(which,hb)]+4*i,4)} offset:{hb*16384 + i*1024}") for i in range(4)]
        return r
    items = []
    for t in range(18):
        if t % 2 == 0: items.append(("x", t // 2))
        items.append(("wq", t))
    def issue(it): return log.note(wq_dma(it[1]) if it[0] == "wq" else x_dma(it[1]))
    for _ in range(cfg.init_items):
        o += issue(items.pop(0))
    o += L(f"s_getpc_b64 s[{sT+2}:{sT+3}]") + lab("L_pc1")
    o.append(I(f"s_sub_u32 s{sT+2}, s{sT+2}, L_pc1-L_begin", "salu"))
    o += L(f"s_subb_u32 s{sT+3}, s{sT+3}, 0", f"s_and_b32 s{sT}, s{sB}, 1", f"s_lshl_b32 s{sT}, s{sT}, 2", f"s_add_u32 s{sT}, s{sT}, s{sW}",
           f"s_lshl_b32 s{sT}, s{sT}, 13", f"v_lshlrev_b32 v{a}, 7, v{l}", f"v_add_u32 v{a}, s{sT}, v{a}")
    o.append(I(f"s_mov_b32 s{sT+1}, L_end-L_begin-4", "salu", wr=[("s", sT+1)]))
    o += L(f"v_min_u32 v{a}, s{sT+1}, v{a}")
    o += log.note([ins(f"global_load_dword v{DUM}, v{a}, s[{sT+2}:{sT+3}]", tag="code")])
    o += attn_addr_init()
    o += L(f"v_lshrrev_b32 v{c}, 4, v{l}", f"v_lshlrev_b32 v{a}, 11, v{c}",
           f"v_bfe_u32 v{b}, v{l}, 2, 2", f"v_lshl_add_u32 v{a}, v{b}, 6, v{a}",
           f"v_and_b32 v{b}, 1, v{l}", f"v_lshl_add_u32 v{a}, v{b}, 4, v{a}",
           f"v_bfe_u32 v{b}, v{l}, 1, 1", f"v_lshl_add_u32 v{a}, v{b}, 3, v{a}",
           f"v_and_b32 v{b}, 1, v{c}", f"v_xor_b32 v{b}, s{sS}, v{b}", f"v_lshl_add_u32 v{a}, v{b}, 5, v{a}",
           f"s_lshr_b32 s{sT}, s{sW}, 1", f"s_lshl_b32 s{sT+1}, s{sT}, 13", f"v_add_u32 v{WA[0]}, s{sT+1}, v{a}", f"v_xor_b32 v{WA[1]}, 32, v{WA[0]}")
    o += L(f"v_bfe_u32 v{a}, v{l}, 3, 1", f"v_lshlrev_b32 v{a}, 10, v{a}", f"v_and_b32 v{b}, 7, v{l}", f"v_lshl_add_u32 v{a}, v{b}, 6, v{a}",
           f"v_bfe_u32 v{b}, v{l}, 2, 1", f"v_lshlrev_b32 v{b}, 1, v{b}", f"v_xor_b32 v{b}, v{b}, v{c}", f"v_lshl_add_u32 v{a}, v{b}, 4, v{a}",
           f"v_add_u32 v{X9}, {32768+16384}, v{a}", f"s_lshl_b32 s{sT+1}, s{sS}, 13", f"s_add_u32 s{sT+1}, s{sT+1}, 32768",
           f"v_add_u32 v{XA}, s{sT+1}, v{a}")
    o += L(f"v_lshlrev_b32 v{a}, 4, v{l}", f"v_add_u32 v{DW[0]}, s{sWM}, v{a}", f"v_add_u32 v{DW[1]}, {VRB}, v{DW[0]}",
           f"s_lshl_b32 s{sT}, s{sT}, 12", f"s_add_u32 s{sT}, s{sT}, {Q9X}", f"s_lshl_b32 s{sT+1}, s{sS}, 9",
           f"v_xor_b32 v{a}, s{sT+1}, v{a}", f"v_add_u32 v{Q9R}, s{sT}, v{a}",
           f"v_and_b32 v{a}, 31, v{l}", f"v_lshlrev_b32 v{a}, 4, v{a}", f"v_lshrrev_b32 v{b}, 5, v{l}", f"v_lshl_add_u32 v{a}, v{b}, 3, v{a}",
           f"s_add_u32 s{sT}, s{sT}, s{sT+1}", f"v_add_u32 v{Q9W}, s{sT}, v{a}",
           f"s_mov_b32 s{sSC}, {f32(math.log2(math.e) / math.sqrt(128.0))}")
    o += L(*[f"v_mov_b32 v{LSV[t]}, 0" for t in range(5)])
    ACC = [128, 160, 192, 224, 112]
    FB = [0, 52]
    def reads(t):
        fb = FB[t & 1]
        xo = (t & 1) * 512
        xr = [ins(f"ds_read_b128 {rn('a',fb+32+4*i,4)}, v{XA} offset:{xo + i*2048}") for i in range(4)]
        xr.append(ins(f"ds_read_b128 {rn('a',fb+48,4)}, v{X9} offset:{xo}"))
        wr = lambda i: [ins(f"ds_read_b64_tr_b16 {rn('a',fb+4*i+2*e,2)}, v{WA[i&1]} offset:{(t&1)*16384 + e*1024 + (i>>1)*256}") for e in range(2)]
        r = wr(0) + xr
        for i in range(1, 8): r += wr(i)
        if t & 1 and t < 17:
            d = QSLOT if ((t >> 1) % 3) < 2 else -2 * QSLOT
            r += L(*[f"v_add_u32 v{v}, {d}, v{v}" for v in (WA[0], WA[1], XA, X9)])
        return r
    def qm(t, tile, i):
        fb = FB[t & 1]
        d = ACC[tile] + (4 * i if tile < 4 else 2 * i)
        return mfma(d, "v", fb + 4 * i, "a", fb + 32 + 4 * tile, "a", None if t == 0 else d)
    def qtile(t, tile): return [qm(t, tile, i) for i in range(8) if tile < 4 or i % 2 == 0]
    def bar(t):
        need = [("wq", t)] + ([("x", t >> 1)] if t % 2 == 0 else [])
        return L(f"s_waitcnt vmcnt({log.n(need)}) lgkmcnt(0)", "s_barrier")
    o += bar(0) + stamp(cfg, 1)
    P = reads(0)
    kvq = [("K", 0), ("V", 0), ("K", 1), ("V", 1), ("K", 2)]
    g0 = 0
    for t in range(16):
        P += at(bar(t + 1), g0 + 1)
        r = reads(t + 1)
        for i, x in enumerate(r): x.at = g0 + 2 + i
        P += r
        vm = []
        k = 0
        while items and k < cfg.rate and ((items[0][0] == "wq" and items[0][1] <= t + 6) or (items[0][0] == "x" and 2 * items[0][1] - 4 <= t + 1)):
            vm += issue(items.pop(0)); k += 1
        if kvq and t >= cfg.kv0 and (t - cfg.kv0) % cfg.kvd == 0:
            vm += log.note(kv_reg(*kvq.pop(0)))
        nv = sum(1 for x in vm if x.kind != "salu")
        i = 0
        for x in vm:
            x.at = g0 + 2 + (i * 32) // max(nv, 1) - (1 if x.kind == "salu" else 0)
            if x.kind != "salu": i += 1
        P += vm
        if t == 12: P += at(drain("K", 0), g0 + 24)
        if t == 13: P += at(drain("K", 1) + drain("K", 2), g0 + 24)
        if t == 15: P += at(drain("V", 0) + drain("V", 1), g0 + 24)
        for i in range(8):
            for tile in range(5):
                if tile < 4 or i % 2 == 0: P.append(qm(t, tile, i))
        g0 += 36
    assert not items and not kvq
    gj = g0
    P += at(bar(17), g0 + 1)
    P += reads(17)
    vm = log.note(kv_dma_abs(cfg, "V", 2) + kv_dma_abs(cfg, "K", 3))
    for i, x in enumerate(vm): x.at = g0 + 13 + i
    P += vm
    P += L(*[f"v_accvgpr_write_b32 a{ONES+i}, s{sT+4}" for i in range(4)])
    def conv(tile):
        src = ACC[tile]; r = []
        if tile == 4:
            r += L(*[f"v_mul_f32 v{src+i}, s{sSC}, v{src+i}" for i in range(16)])
            r += L(*[f"v_cvt_pk_bf16_f32 v{src+i}, v{src+2*i}, v{src+2*i+1}" for i in range(8)])
            r += [ins(f"ds_write_b64 v{Q9W}, {rn('v',src+2*u,2)} offset:{u*1024}") for u in range(4)]
            r += L("s_waitcnt lgkmcnt(0)", "s_barrier")
            r += [ins(f"ds_read_b128 {rn('v',QF[4]+4*u,4)}, v{Q9R} offset:{u*1024}") for u in range(4)]
            return r
        sw = []
        for u in range(4):
            s_, d = src + 8 * u, QF[tile] + 4 * u
            r += L(*[f"v_mul_f32 v{s_+i}, s{sSC}, v{s_+i}" for i in range(8)])
            r += sw
            r += L(*[f"v_cvt_pk_bf16_f32 v{d+i}, v{s_+2*i}, v{s_+2*i+1}" for i in (0, 2, 1, 3)])
            sw = L(f"v_permlane32_swap_b32 v{d}, v{d+2}", f"v_permlane32_swap_b32 v{d+1}, v{d+3}")
        return r + sw
    KALT = 104
    P += qtile(16, 4) + qtile(16, 0) + qtile(16, 1) + qtile(17, 4)
    P += [kread(0, 0, f) for f in range(8)]
    P += conv(4)
    P += [kread(1, 0, f, KALT) for f in range(8)]
    P += [vread(0, 0, dt, e) for dt in range(8) for e in range(2)]
    P += qtile(17, 0) + conv(0) + qtile(16, 2) + qtile(17, 1) + conv(1) + qtile(16, 3) + qtile(17, 2)
    P += [qk(0, 0, f, True) for f in range(8)]
    P += conv(2) + qtile(17, 3) + mref(0)
    P += [qk(0, 1, f, True) for f in range(8)] + conv(3) + mref(1)
    P += [qk(0, 4, f, True) for f in range(8)]
    P += [qk(0, 2, f, True) for f in range(8)] + mref(2)
    def smt(p, t):
        r, post = [], []
        for i in range(8):
            ex, po = sm_ops(cfg, p, t, i)
            r += [ex] + post; post = po
        return r + post
    P += [qk(1, 0, f, src=KALT) for f in range(8)]
    P += [qk(0, 3, f, True) for f in range(8)] + mref(3) + smt(0, 0)
    P += [qk(1, 1, f, src=KALT) for f in range(8)] + smt(0, 1)
    P += [qk(1, 2, f, src=KALT) for f in range(8)] + smt(0, 2)
    P += [qk(1, 3, f, src=KALT) for f in range(8)] + smt(0, 3) + mref(4) + smt(0, 4)
    P += stamp(cfg, 2)
    P += L("s_waitcnt lgkmcnt(0)", "s_barrier")
    gB = sum(1 for x in P if x.kind == "mfma")
    vm = log.note(kv_dma_abs(cfg, "V", 3) + kv_dma_abs(cfg, "K", 4))
    i = 0
    for x in vm:
        x.at = gB + 10 + i * 12 - (1 if x.kind == "salu" else 0)
        if x.kind != "salu": i += 1
    P += vm
    P += [kread(0, 1, f) for f in range(8)]
    P += L(f"v_xor_b32 v{KA[0]}, 0x8000, v{KA[0]}")
    for t in range(5):
        P += [pv(0, t, dt, True) for dt in range(8)]
        if not use_add(cfg, 0, t): P.append(lm(0, t, True))
        elif not use_add(cfg, 1, t): raise ValueError
        if t < 4: P += smt(1, t)
    P += [vread(1, 0, dt, e) for dt in range(8) for e in range(2)]
    _, _, C, D = phases(cfg)
    P += C
    P += [kread(1, 1, f) for f in range(8)]
    pend = []
    for (p, t, r_) in elems(0):
        ex, post = sm_ops(cfg, p, t, r_)
        P += [x for x in [ex] + pend if x.txt not in wrapped]
        pend = post
    P += D
    P += L(f"s_add_u32 s{sVM}, s{sWM}, {VRB}", f"s_add_u32 s{sKM}, s{sWM}, 16384",
           f"s_add_u32 s{sVO}, s{sWM}, {4*16384}", f"s_add_u32 s{sKO}, s{sWM}, {5*16384}", f"s_mov_b32 s{sCNT}, 0")
    o += L(f"s_mov_b32 s{sT+4}, 0x3f803f80")
    S = sched(P, budget=lambda g: 8 if (g < gj + 24 or g > gB + 40) else cfg.tb)
    S, outq = add_lgkm_waits(S)
    S = fix_hazards(S)
    print("front: mfma", sum(1 for x in S if x.kind == "mfma"), "est cycles", est_cycles(S), file=sys.stderr)
    return o + S + L("s_waitcnt lgkmcnt(0)")

def srd_setup():
    o = L("s_waitcnt lgkmcnt(0)")
    o += L(f"s_mul_i32 s{sT}, s{sB}, 165888",
           f"s_add_u32 s{SRDX}, s8, s{sT}", f"s_addc_u32 s{SRDX+1}, s9, 0", f"s_mov_b32 s{SRDX+2}, 165888", f"s_mov_b32 s{SRDX+3}, 0x00020000",
           f"s_lshl_b32 s{sT}, s{sHKV}, 9",
           f"s_add_u32 s{SRDWQ}, s14, s{sT}", f"s_addc_u32 s{SRDWQ+1}, s15, 0", f"s_sub_u32 s{SRDWQ+2}, {576*8192}, s{sT}", f"s_mov_b32 s{SRDWQ+3}, 0x00020000",
           f"s_lshl_b32 s{sT}, s{sB}, 4", f"s_add_u32 s{sT}, s{sT}, s{sHKV}", f"s_lshl_b32 s{sT}, s{sT}, 18",
           f"s_add_u32 s{SRDK}, s10, s{sT}", f"s_addc_u32 s{SRDK+1}, s11, 0", f"s_mov_b32 s{SRDK+2}, 262144", f"s_mov_b32 s{SRDK+3}, 0x00020000",
           f"s_add_u32 s{SRDV}, s12, s{sT}", f"s_addc_u32 s{SRDV+1}, s13, 0", f"s_mov_b32 s{SRDV+2}, 262144", f"s_mov_b32 s{SRDV+3}, 0x00020000")
    return o

def back(cfg, wrapped, outq):
    l, l16, l4, wa, ma = T0, T0 + 1, T0 + 2, T0 + 3, T0 + 4
    P = []
    P += lane_id(l)
    P += L(f"v_lshlrev_b32 v{l16}, 4, v{l}", f"v_lshlrev_b32 v{l4}, 2, v{l}",
           f"s_lshl_b32 s{sT}, s{sW}, 13", f"s_add_u32 s{sT}, s{sT}, {O9X}", f"v_add_u32 v{wa}, s{sT}, v{l16}",
           f"s_lshl_b32 s{sT}, s{sW}, 9", f"v_add_u32 v{ma}, s{sT}, v{l4}")
    P += L(f"s_mul_i32 s{sT}, s{sBR}, 72", f"s_mul_i32 s{sT+1}, s{sB}, 9", f"s_add_u32 s{sT}, s{sT}, s{sT+1}", f"s_lshl_b32 s{sT}, s{sT}, 17",
           f"s_add_u32 s{SRDO}, s16, s{sT}", f"s_addc_u32 s{SRDO+1}, s17, 0", f"s_mov_b32 s{SRDO+2}, {9*131072}", f"s_mov_b32 s{SRDO+3}, 0x00020000",
           f"s_lshl_b32 s{sT}, s{sHKV}, 1", f"s_lshr_b32 s{sT+1}, s{sW}, 1", f"s_add_u32 s{sT}, s{sT}, s{sT+1}", f"s_lshl_b32 s{sT}, s{sT}, 12",
           f"s_lshl_b32 s{sT+1}, s{sS}, 11", f"s_add_u32 s{sOUT+4}, s{sT}, s{sT+1}", f"s_add_u32 s{sOUT+4}, s{sOUT+4}, {8*131072}",
           f"s_lshl_b32 s{sT+1}, s{sS}, 19", f"s_add_u32 s{sOUT}, s{sT}, s{sT+1}")
    for t in range(1, 4):
        P += L(f"s_add_u32 s{sOUT+t}, s{sOUT}, {t*131072}")
    P += [vread(0, 1, dt, e) for dt in range(8) for e in range(2)]
    pend = []
    for (p, t, r_) in elems(0):
        ex, post = sm_ops(cfg, p, t, r_)
        P += [x for x in [ex] + pend if x.txt in wrapped]
        pend = post
    P += [x for x in pend if x.txt in wrapped]
    P += at(L("s_waitcnt vmcnt(0)", "s_barrier"), 24)
    if cfg.wo_touch:
        P += L(f"s_lshl_b32 s{sT}, s{sB}, 4", f"s_add_u32 s{sT}, s{sT}, s{sHKV}", f"s_lshl_b32 s{sT}, s{sT}, 2",
               f"s_add_u32 s{sT}, s{sT}, s{sW}", f"s_mul_i32 s{sT}, s{sT}, 9216",
               f"s_add_u32 s{SRDT}, s18, s{sT}", f"s_addc_u32 s{SRDT+1}, s19, 0", f"s_movk_i32 s{SRDT+2}, 9216", f"s_mov_b32 s{SRDT+3}, 0x00020000",
               f"v_lshlrev_b32 v{T0+5}, 7, v{l}", f"s_movk_i32 s{sT}, 8192",
               f"buffer_load_dword v{T0+6}, v{T0+5}, {srd(SRDT)}, 0 offen", f"buffer_load_dword v{T0+6}, v{T0+5}, {srd(SRDT)}, s{sT} offen")
    def smt(p, t):
        r, post = [], []
        for i in range(8):
            ex, po = sm_ops(cfg, p, t, i)
            r += [ex] + post; post = po
        return r + post
    for t in range(4):
        P += [qk(1, t, f) for f in range(8)] + smt(1, t)
    P += [pv(0, t, dt) for dt in range(8) for t in range(4)]
    P += [lm(0, t) for t in range(4) if not use_add(cfg, 0, t)]
    P += [lm(0, 4)]
    W = 204
    for dt in range(8):
        P.append(pv(0, 4, dt))
        P += [vread(1, 1, dt, e) for e in range(2)]
    P += [lm(1, t) for t in range(4) if not use_add(cfg, 1, t)]
    LV = [T0 + 7 + t for t in range(5)]
    P += L(f"v_accvgpr_read_b32 v{LV[4]}, a{LA[4]}")
    P += [ins(f"ds_write_b128 v{wa}, {rn('a',OA[4]+4*dt,4)} offset:{dt*1024}") for dt in range(8)]
    P += L(f"ds_write_b32 v{ma}, v{NM[4]} offset:{MX}", f"ds_write_b32 v{ma}, v{LV[4]} offset:{MX+256}")
    for t in range(4):
        both = use_add(cfg, 0, t)
        if not both: P += L(f"v_accvgpr_read_b32 v{LV[t]}, a{LA[t]}")
        if use_add(cfg, 1, t):
            b = T0 + 12
            P += L(f"v_mov_b32 v{b}, v{LSV[t]}", f"v_permlane32_swap_b32 v{LSV[t]}, v{b}", f"v_add_f32 v{LSV[t]}, v{LSV[t]}, v{b}",
                   f"v_mov_b32 v{b}, v{LSV[t]}", f"v_permlane16_swap_b32 v{LSV[t]}, v{b}", f"v_add_f32 v{LSV[t]}, v{LSV[t]}, v{b}",
                   f"v_mov_b32 v{LV[t]}, v{LSV[t]}" if both else f"v_add_f32 v{LV[t]}, v{LV[t]}, v{LSV[t]}")
    thr = f32(0.0) if cfg.force_fallback else f32(2.0 ** 30)
    c = T0 + 13
    P += L(f"v_add_f32 v{c}, v{LV[0]}, v{LV[1]}", f"v_add_f32 v{c+1}, v{LV[2]}, v{LV[3]}", f"v_add_f32 v{c}, v{c}, v{LV[4]}",
           f"v_add_f32 v{c}, v{c}, v{c+1}", f"v_mov_b32 v{c+1}, {thr}",
           f"v_cmp_ngt_f32 vcc, v{c+1}, v{c}", f"v_cndmask_b32 v{c}, 0, 1, vcc".replace("v_cndmask_b32", "v_cndmask_b32_e64"),
           f"ds_write_b32 v{ma}, v{c} offset:{FLG}")
    P += L(*[f"v_rcp_f32 v{LV[t]}, v{LV[t]}" for t in range(4)])
    P += L("s_waitcnt lgkmcnt(0)", "s_barrier")
    R9 = SR[0][0]
    ra, rb = T0 + 15, T0 + 16
    P += L(f"s_and_b32 s{sT}, s{sW}, 2", f"s_lshl_b32 s{sT+1}, s{sT}, 13", f"s_lshl_b32 s{sT+2}, s{sS}, 12", f"s_add_u32 s{sT+1}, s{sT+1}, s{sT+2}",
           f"s_add_u32 s{sT+1}, s{sT+1}, {O9X}", f"v_add_u32 v{ra}, s{sT+1}, v{l16}",
           f"s_lshl_b32 s{sT}, s{sT}, 9", f"v_add_u32 v{rb}, s{sT}, v{l4}")
    m = 164
    P += L(f"ds_read_b32 v{m}, v{rb} offset:{MX}", f"ds_read_b32 v{m+1}, v{rb} offset:{MX+512}",
           f"ds_read_b32 v{m+2}, v{rb} offset:{MX+256}", f"ds_read_b32 v{m+3}, v{rb} offset:{MX+768}")
    P += L(*[f"ds_read_b32 v{m+4+w}, v{l4} offset:{FLG+512*w}" for w in range(4)])
    for k in range(2):
        P += [ins(f"ds_read_b128 {rn('v',R9+16*k+4*i,4)}, v{ra} offset:{k*8192+i*1024}") for i in range(4)]
    n = 0
    def fin(t):
        nonlocal n
        r = []
        for u in range(4):
            w = W + (n % 4) * 12; n += 1
            r += L(*[f"v_accvgpr_read_b32 v{w+i}, a{OA[t]+8*u+i}" for i in range(8)])
            r += L(*[f"v_mul_f32 v{w+i}, v{w+i}, v{LV[t]}" for i in range(8)])
            r += L(*[f"v_cvt_pk_bf16_f32 v{w+8+i}, v{w+2*i}, v{w+2*i+1}" for i in range(4)])
            r += L(f"buffer_store_dwordx4 {rn('v',w+8,4)}, v{l16}, {srd(SRDO)}, s{sOUT+t} offen offset:{u*1024} sc1")
        return r
    mg = L(f"v_min_f32 v{c}, v{m}, v{m+1}", f"v_sub_f32 v{m}, v{c}, v{m}", f"v_sub_f32 v{m+1}, v{c}, v{m+1}",
           f"v_exp_f32 v{m}, v{m}", f"v_exp_f32 v{m+1}, v{m+1}", f"v_or3_b32 v{m+4}, v{m+4}, v{m+5}, v{m+6}",
           f"v_mul_f32 v{c}, v{m}, v{m+2}", f"v_fmac_f32 v{c}, v{m+1}, v{m+3}", f"v_rcp_f32 v{c}, v{c}", f"v_or_b32 v{m+4}, v{m+4}, v{m+7}",
           f"v_mul_f32 v{m}, v{m}, v{c}", f"v_mul_f32 v{m+1}, v{m+1}, v{c}")
    mg += L(*[f"v_mul_f32 v{R9+i}, v{R9+i}, v{m}" for i in range(16)])
    mg += L(*[f"v_fmac_f32 v{R9+i}, v{R9+16+i}, v{m+1}" for i in range(16)])
    mg += L(*[f"v_cvt_pk_bf16_f32 v{R9+16+i}, v{R9+2*i}, v{R9+2*i+1}" for i in range(8)])
    mg += [ins(f"buffer_store_dwordx4 {rn('v',R9+16+4*u,4)}, v{l16}, {srd(SRDO)}, s{sOUT+4} offen offset:{u*1024} sc1") for u in range(2)]
    for t in range(4):
        P += [pv(1, t, dt) for dt in range(8)]
        P += fin(t)
        if t == 0: P += mg
    P += L(f"v_cmp_ne_u32 vcc, 0, v{m+4}")
    S = sched(P, budget=cfg.tb)
    S, _ = add_lgkm_waits(S, init=outq)
    S = fix_hazards(S)
    print("back: mfma", sum(1 for x in S if x.kind == "mfma"), "est cycles", est_cycles(S), file=sys.stderr)
    S += L(f"s_cmp_lg_u64 vcc, 0", f"s_cselect_b32 s{sT}, 1, 0", f"s_andn2_b32 s{sT}, s{sT}, s{sPASS}", "s_cbranch_scc1 L_fallback")
    return S

def fallback(cfg, wrapped):
    MF = [T0 + 10 + t for t in range(5)]
    B = lab("L_fallback")
    B += L("s_waitcnt vmcnt(0) lgkmcnt(0)", "s_barrier")
    B += attn_addr_init()
    B += L(f"s_mov_b32 s{sPASS}, -1", f"s_mov_b32 s{sCNT}, 0", f"s_mov_b32 s{sKO}, s{sWM}", f"s_mov_b32 m0, s{sWM}")
    B += L(*[f"v_accvgpr_write_b32 a{i}, 0" for i in range(180)])
    B += L(*[f"v_mov_b32 v{LSV[t]}, 0" for t in range(5)])
    B += L(*[f"v_mov_b32 v{MF[t]}, {f32(-3.0e38)}" for t in range(5)])
    B += lab("L_fb_loop")
    B += [ins(f"buffer_load_dwordx4 v{VD[c&1]}, {srd(SRDK)}, s{sKO} offen offset:{c*1024} lds") for c in range(4)]
    B += L("s_waitcnt vmcnt(0)", "s_barrier")
    for p in range(2):
        B += [kread(p, 0, f) for f in range(8)]
        B += L("s_waitcnt lgkmcnt(0)")
        for t in range(5):
            B += [qk(0, t, f, True) for f in range(8)]
        B += L("s_nop 7")
        for t in range(5):
            s = SR[0][t]
            for i in range(0, 8, 2):
                B += L(f"v_max3_f32 v{MF[t]}, v{MF[t]}, v{s+i}, v{s+i+1}")
        B += L("s_nop 1")
    B += L("s_barrier", f"s_add_u32 s{sKO}, s{sKO}, 16384", f"s_add_u32 s{sCNT}, s{sCNT}, 1", f"s_cmp_lt_u32 s{sCNT}, 16", "s_cbranch_scc1 L_fb_loop")
    for t in range(5):
        a, b = MF[t], T0
        B += L(f"v_mov_b32 v{b}, v{a}", "s_nop 1", f"v_permlane32_swap_b32 v{a}, v{b}", f"v_max_f32 v{a}, v{a}, v{b}",
               f"v_mov_b32 v{b}, v{a}", "s_nop 1", f"v_permlane16_swap_b32 v{a}, v{b}")
        B += L(*[f"v_min_f32_e64 v{NM[t]+i}, -v{a}, -v{b}" for i in range(4)])
    for which, hb in (("K", 0), ("V", 0), ("K", 1), ("V", 1), ("K", 2), ("V", 2), ("K", 3)):
        B += kv_dma_abs(cfg, which, hb)
    B += L("s_waitcnt vmcnt(0)", "s_barrier")
    B += [kread(0, 0, f) for f in range(8)]
    B += L("s_waitcnt lgkmcnt(0)")
    for t in range(5):
        B += [qk(0, t, f) for f in range(8)]
    B += [kread(1, 0, f) for f in range(8)]
    B += L("s_nop 7")
    ex_, po_ = [], []
    for (p, t, r_) in elems(0):
        ex, post = sm_ops(cfg, p, t, r_)
        ex_ += [x for x in [ex] if x.txt not in wrapped]
        po_ += [x for x in post if x.txt not in wrapped]
    B += ex_ + L("s_nop 0") + po_
    B += L(f"s_add_u32 s{sVM}, s{sWM}, {VRB + 3*16384}", f"s_mov_b32 s{sKM}, s{sWM}",
           f"s_add_u32 s{sVO}, s{sWM}, {3*16384}", f"s_add_u32 s{sKO}, s{sWM}, {4*16384}", f"s_mov_b32 s{sCNT}, -1",
           "s_waitcnt lgkmcnt(0)", "s_branch L_loop_mid")
    return B

def oproj(cfg):
    OD = cfg.od
    WS = 40960
    R = 9
    BC = 4 * WS - 64
    SRDA, SRDB, SRDC = 20, 24, 28
    sN, sM, sWB = 44, 45, 46
    l = 1
    VO = [2, 3, 4, 5, 6, 7]; VW = [8, 9, 10, 11]; RA = [12, 13, 14, 15]
    a, b = 16, 17
    o = []
    o += L("s_waitcnt vmcnt(0)", "s_barrier") + stamp(cfg, 5) + rstamp(cfg, 7)
    o += L(f"s_mov_b32 s{SRDT}, s98", f"s_mov_b32 s{SRDT+1}, s99", f"s_movk_i32 s{SRDT+2}, 256", f"s_mov_b32 s{SRDT+3}, 0x00020000",
           f"s_cmp_eq_u32 s{sW}, 0", "s_cbranch_scc0 L_nosig",
           f"s_lshl_b32 s{sT}, s{sBR}, 2", f"s_lshr_b32 s{sT+1}, s{sB}, 1", f"s_add_u32 s{sT}, s{sT}, s{sT+1}", f"s_lshl_b32 s{sT}, s{sT}, 5",
           f"s_and_b32 s{sT+1}, s{sB}, 1", f"s_lshl_b32 s{sT+1}, s{sT+1}, 3", f"s_lshl_b32 s{sOLD}, 1, s{sT+1}",
           f"v_mov_b32 v20, s{sOLD}", "v_mov_b32 v21, 0", "v_mov_b32 v22, 0", "s_mov_b64 exec, 1",
           f"buffer_atomic_add_x2 v[20:21], v22, {srd(SRDT)}, s{sT} offen sc0", "s_mov_b64 exec, -1")
    o += lab("L_nosig")
    if cfg.stamps:
        o += dump_stamps(cfg, 0x2000000) + stamp(cfg, 0) + rstamp(cfg, 6)
        o += L(f"s_mov_b32 s{SRDT}, s98", f"s_mov_b32 s{SRDT+1}, s99", f"s_movk_i32 s{SRDT+2}, 256")
    o += L(f"s_lshr_b32 s{sTILE}, s2, 3", f"s_and_b32 s{sMQ}, s2, 3", f"s_mov_b32 s{sNEED}, 1")
    o += lane_id(l)
    o += L(f"s_mul_i32 s{sWB}, s{sW}, {WS}",
           f"s_lshl_b32 s{sT}, s{sW}, 15", f"v_lshlrev_b32 v{a}, 4, v{l}", f"v_add_u32 v{VO[0]}, s{sT}, v{a}")
    for i in range(1, 6):
        o += L(f"v_add_u32 v{VO[i]}, {i*131072}, v{VO[0]}")
    o += L(f"v_lshrrev_b32 v{a}, 3, v{l}", f"v_mul_u32_u24 v{b}, 1152, v{a}", f"v_lshrrev_b32 v{a}, 4, v{l}", f"v_lshlrev_b32 v{a}, 1, v{a}",
           f"v_and_b32 v{VW[1]}, 7, v{l}", f"v_xor_b32 v{a}, v{a}, v{VW[1]}", f"v_lshl_add_u32 v{a}, v{a}, 4, v{b}",
           f"s_mul_i32 s{sT}, s{sW}, {1024*1152}", f"v_add_u32 v{VW[0]}, s{sT}, v{a}")
    for c in range(1, 4):
        o += L(f"v_add_u32 v{VW[c]}, {c*(8*1152-1024)}, v{VW[0]}")
    o += L(f"v_lshrrev_b32 v{a}, 5, v{l}", f"v_lshlrev_b32 v{a}, 10, v{a}", f"v_bfe_u32 v{b}, v{l}, 2, 3", f"v_lshl_add_u32 v{a}, v{b}, 7, v{a}",
           f"v_and_b32 v{b}, 3, v{l}", f"v_lshl_add_u32 v{a}, v{b}, 3, v{a}", f"v_add_u32 v{a}, s{sWB}, v{a}",
           f"v_bfe_u32 v{b}, v{l}, 3, 2", f"v_xor_b32 v{b}, s{sW}, v{b}", f"v_lshl_add_u32 v{RA[0]}, v{b}, 5, v{a}")
    for i in range(1, 4):
        o += L(f"v_xor_b32 v{RA[i]}, {32*i}, v{RA[0]}")
    o += L(f"s_mov_b32 s{SRDC}, s96", f"s_mov_b32 s{SRDC+1}, s97", f"s_mov_b32 s{SRDC+2}, {1152*2304}", f"s_mov_b32 s{SRDC+3}, 0x00020000",
           f"v_mov_b32 v23, {BC}")
    o += L(f"s_cmp_lt_u32 s{sTILE}, 27", "s_cbranch_scc0 L_notile")
    o += lab("L_tile")
    o += L(f"s_mul_i32 s{sN}, s{sTILE}, 43", f"s_lshr_b32 s{sN}, s{sN}, 7", f"s_mul_i32 s{sT}, s{sN}, 3", f"s_sub_u32 s{sT+4}, s{sTILE}, s{sT}",
           f"s_mul_i32 s{sM}, s{sMQ}, 3", f"s_add_u32 s{sM}, s{sM}, s{sT+4}",
           f"s_mul_i32 s{sT}, s{sBR}, 72", f"s_mul_i32 s{sT+1}, s{sM}, 6", f"s_add_u32 s{sT}, s{sT}, s{sT+1}", f"s_lshl_b32 s{sT}, s{sT}, 17",
           f"s_add_u32 s{SRDB}, s16, s{sT}", f"s_addc_u32 s{SRDB+1}, s17, 0", f"s_mov_b32 s{SRDB+2}, {6*131072}", f"s_mov_b32 s{SRDB+3}, 0x00020000",
           f"s_lshl_b32 s{sT}, s{sN}, 7",
           f"s_add_u32 s{SRDA}, s18, s{sT}", f"s_addc_u32 s{SRDA+1}, s19, 0", f"s_sub_u32 s{SRDA+2}, {4096*1152}, s{sT}", f"s_mov_b32 s{SRDA+3}, 0x00020000")
    log = VLog()
    BF = 32
    RB = OD + 1
    AF = BF + RB * 24
    ACCV = AF + 32
    assert ACCV + 24 <= 256
    def wl(t):
        r = L(f"s_add_u32 m0, s{sWB}, {(t%R)*4096}", f"s_mov_b32 s{sSO}, {t*32*1152}")
        r += [ins(f"buffer_load_dwordx4 v{VW[c]}, {srd(SRDA)}, s{sSO} offen offset:{c*1024} lds", tag=("w", t)) for c in range(4)]
        return log.note(r)
    def ol(t):
        r = L(f"s_movk_i32 s{sX5}, {(t>>2)*4096}") if t % 4 == 0 else []
        r += [ins(f"buffer_load_dwordx4 {rn('v',BF+(t%RB)*24+4*i,4)}, v{VO[i]}, {srd(SRDB)}, s{sX5} offen offset:{(t&3)*1024} sc1", tag=("o", t)) for i in range(6)]
        return log.note(r)
    def ar(t):
        return [ins(f"ds_read_b64_tr_b16 {rn('v',AF+(t&1)*16+4*i+2*e,2)}, v{RA[i]} offset:{(t%R)*4096 + e*2048}") for i in range(4) for e in range(2)]
    WD = R - 1
    for t in range(WD):
        o += wl(t)
    o += L(f"s_cmp_eq_u32 s{sW}, 0", "s_cbranch_scc0 L_pdone", f"s_cmp_eq_u32 s{sNEED}, 0", "s_cbranch_scc1 L_pdone",
           f"s_cmp_eq_u32 s{sT+4}, 0", f"s_cselect_b32 s{sT+5}, 0x10, 0x1010", f"s_cmp_eq_u32 s{sT+4}, 2", f"s_cselect_b32 s{sT+5}, 0x1000, s{sT+5}",
           f"s_lshl_b32 s{sT}, s{sBR}, 2", f"s_add_u32 s{sT}, s{sT}, s{sMQ}", f"s_lshl_b32 s{sT}, s{sT}, 5", f"s_mov_b32 s{sT+1}, 0",
           f"s_mov_b32 s{sT+6}, 0", "s_mov_b64 exec, 1")
    o += lab("L_poll")
    o += L(f"buffer_load_dword v24, v22, {srd(SRDT)}, s{sT} offen sc1", "s_waitcnt vmcnt(0)", f"v_readfirstlane_b32 s{sT+2}, v24",
           f"s_and_b32 s{sT+2}, s{sT+2}, s{sT+5}", f"s_cmp_eq_u32 s{sT+2}, s{sT+5}", "s_cbranch_scc1 L_pok",
           f"s_sleep {cfg.psleep}", f"s_add_u32 s{sT+1}, s{sT+1}, 1", f"s_cmp_lt_u32 s{sT+1}, {cfg.spin}", "s_cbranch_scc1 L_poll")
    o += L(f"s_lshl_b32 s{sT+2}, 1, s{sTILE}", "v_mov_b32 v24, 0", f"v_mov_b32 v25, s{sT+2}",
           f"buffer_atomic_or_x2 v[24:25], v22, {srd(SRDT)}, s{sT} offen sc0", "s_waitcnt vmcnt(0)", f"v_readfirstlane_b32 s{sT+2}, v24",
           f"s_cmp_eq_u32 s{sT+2}, 0x1010", f"s_cselect_b32 s{sT+6}, 0, 0x80000000")
    o += lab("L_pok")
    def pickup_word():
        return L(f"v_readfirstlane_b32 s{sT+2}, v20", f"v_readfirstlane_b32 s{sT+3}, v21", f"s_add_u32 s{sT+2}, s{sT+2}, s{sOLD}",
                 f"s_and_b32 s{sT+3}, s{sT+3}, 0x7ffffff", f"s_cmp_eq_u32 s{sT+2}, 0x1010", f"s_cselect_b32 s{sT+3}, s{sT+3}, 0",
                 f"s_or_b32 s{sT+3}, s{sT+3}, s{sT+6}", f"v_mov_b32 v24, s{sT+3}", "ds_write_b32 v23, v24", "s_mov_b64 exec, -1", "s_waitcnt lgkmcnt(0)")
    o += pickup_word()
    o += lab("L_pdone")
    o += L("s_barrier") + stamp(cfg, 1)
    o += L(f"s_cmp_eq_u32 s{sNEED}, 0", "s_cbranch_scc1 L_go", "ds_read_b32 v24, v23", "s_waitcnt lgkmcnt(0)", f"v_readfirstlane_b32 s{sMASK}, v24",
           f"s_mov_b32 s{sNEED}, 0", f"s_bitcmp1_b32 s{sMASK}, 31", "s_cbranch_scc1 L_next")
    o += lab("L_go")
    P = []
    for t in range(OD):
        P += ol(t)
    P += L(f"s_waitcnt vmcnt({log.n([('w', 0)])})") + ar(0)
    o += P
    P = []
    NS = 32
    def acc(i, m): return ("v", ACCV + 4 * m) if i == 0 else ("a", 24 * (i - 1) + 4 * m)
    g0 = 0
    for t in range(NS):
        w = ins(f"s_waitcnt vmcnt({log.n([('o', t)] + ([('w', t+1)] if t + 1 < NS else []))})")
        w.wr = [("x", "odata")]
        w.at = g0 - 1
        P.append(w)
        if t + 1 < NS: P += ar(t + 1)
        vm = (ol(t + OD) if t + OD < NS else []) + (wl(t + WD) if t + WD < NS else [])
        order = [(i, m) for m in range(6) for i in range(4)] if t < NS - 1 else [(i, m) for i in (1, 2, 3, 0) for m in range(6)]
        P += vm
        for (i, m) in order:
            f, d = acc(i, m)
            x = mfma(d, f, AF + (t & 1) * 16 + 4 * i, "v", BF + (t % RB) * 24 + 4 * m, "v", None if t == 0 else d)
            x.rd.append(("x", "odata"))
            P.append(x)
        g0 += 24
    SG = 6144
    P += L(f"v_lshlrev_b32 v{a}, 4, v{l}", f"v_add_u32 v{b}, s{sWB}, v{a}")
    pw = [ins(f"ds_write_b128 v{b}, {rn('a',24*(i-1)+4*m,4)} offset:{(i-1)*SG + m*1024}") for i in (1, 2, 3) for m in range(6)]
    P += pw
    for i in (1, 2, 3):
        P += L(f"s_xor_b32 s{sT}, s{sW}, {i}", f"s_mul_i32 s{sT}, s{sT}, {WS}", f"v_add_u32 v{18+i-1 if i < 3 else 26}, s{sT}, v{a}")
    P += L(f"v_and_b32 v27, 15, v{l}", "v_mul_u32_u24 v27, 2304, v27", f"v_lshrrev_b32 v28, 4, v{l}", "v_lshl_add_u32 v27, v28, 3, v27",
           f"s_mul_i32 s{sT}, s{sM}, {96*2304}", f"s_mul_i32 s{sT+1}, s{sBR}, 1152", f"s_add_u32 s{sT}, s{sT}, s{sT+1}",
           f"s_lshl_b32 s{sT+1}, s{sN}, 7", f"s_add_u32 s{sT}, s{sT}, s{sT+1}", f"s_lshl_b32 s{sT+1}, s{sW}, 5", f"s_add_u32 s{sOUT}, s{sT}, s{sT+1}")
    for m in range(1, 6):
        P += L(f"s_add_u32 s{sOUT+m}, s{sOUT}, {m*16*2304}")
    S = sched(P, budget=8)
    S += stamp(cfg, 2)
    S += L("s_waitcnt lgkmcnt(0)", "s_barrier") + stamp(cfg, 3)
    RR = BF
    for m in range(6):
        for i in (1, 2, 3):
            S += L(f"ds_read_b128 {rn('v',RR+12*m+4*(i-1),4)}, v{18+i-1 if i < 3 else 26} offset:{(i-1)*SG + m*1024}")
    for m in range(6):
        r = RR + 12 * m; d = ACCV + 4 * m
        S += L(f"v_pk_add_f32 {rn('v',d,2)}, {rn('v',d,2)}, {rn('v',r,2)}", f"v_pk_add_f32 {rn('v',d+2,2)}, {rn('v',d+2,2)}, {rn('v',r+2,2)}",
               f"v_pk_add_f32 {rn('v',r+4,2)}, {rn('v',r+4,2)}, {rn('v',r+8,2)}", f"v_pk_add_f32 {rn('v',r+6,2)}, {rn('v',r+6,2)}, {rn('v',r+10,2)}",
               f"v_pk_add_f32 {rn('v',d,2)}, {rn('v',d,2)}, {rn('v',r+4,2)}", f"v_pk_add_f32 {rn('v',d+2,2)}, {rn('v',d+2,2)}, {rn('v',r+6,2)}",
               f"v_cvt_pk_bf16_f32 v{r}, v{d}, v{d+1}", f"v_cvt_pk_bf16_f32 v{r+1}, v{d+2}, v{d+3}",
               f"buffer_store_dwordx2 {rn('v',r,2)}, v27, {srd(SRDC)}, s{sOUT+m} offen")
    S, _ = add_lgkm_waits(S, init=[set(x.wr) for x in ar(0)])
    S = fix_hazards(S)
    print("oproj: est cycles", est_cycles(S), file=sys.stderr)
    o += S
    if cfg.stamps:
        o += stamp(cfg, 4) + L("s_waitcnt vmcnt(0)") + stamp(cfg, 5) + rstamp(cfg, 7) + dump_stamps(cfg, 0x2010000)
    o += lab("L_next")
    o += L(f"s_and_b32 s{sMASK}, s{sMASK}, 0x7ffffff", "s_cbranch_scc0 L_exit",
           f"s_ff1_i32_b32 s{sTILE}, s{sMASK}", f"s_bitset0_b32 s{sMASK}, s{sTILE}", f"s_lshr_b32 s{sMQ}, s{sB}, 1",
           "s_waitcnt vmcnt(0) lgkmcnt(0)", "s_barrier", "s_branch L_tile")
    o += lab("L_notile")
    o += L(f"s_cmp_eq_u32 s{sW}, 0", "s_cbranch_scc0 L_nt2", f"s_mov_b32 s{sT+6}, 0", "s_waitcnt vmcnt(0)", "s_mov_b64 exec, 1")
    o += pickup_word()
    o += lab("L_nt2")
    o += L("s_barrier", "ds_read_b32 v24, v23", "s_waitcnt lgkmcnt(0)", f"v_readfirstlane_b32 s{sMASK}, v24", f"s_mov_b32 s{sNEED}, 0", "s_branch L_next")
    return o

def kernel(cfg):
    o = lab("L_begin") + stamp(cfg, 0) + rstamp(cfg, 6)
    o += L("s_cmp_ge_u32 s2, 256", "s_cbranch_scc1 L_exit")
    o += L(f"s_bfe_u32 s{sBR}, s2, 0x10002", f"s_mul_i32 s{sT}, s{sBR}, 40")
    o.append(I(f"s_load_dwordx8 s[8:15], s[0:1], s{sT}", "salu"))
    o.append(I("s_load_dwordx2 s[16:17], s[0:1], 96", "salu"))
    o.append(I("s_load_dwordx4 s[96:99], s[0:1], 80", "salu"))
    o += L(f"s_add_u32 s{sT}, s{sT}, 32")
    o.append(I(f"s_load_dwordx2 s[18:19], s[0:1], s{sT}", "salu"))
    o += L("v_lshrrev_b32 v1, 6, v0",
           f"s_and_b32 s{sHKV}, s2, 3", f"s_lshl_b32 s{sHKV}, s{sHKV}, 2", f"s_bfe_u32 s{sT}, s2, 0x20003",
           f"s_add_u32 s{sHKV}, s{sHKV}, s{sT}", f"s_lshr_b32 s{sB}, s2, 5",
           f"v_readfirstlane_b32 s{sW}, v1", f"s_mov_b32 s{sPASS}, 0", f"s_and_b32 s{sS}, s{sW}, 1")
    M1, F1, wr1, _ = iter_plan(cfg, 1)
    M0, F0, wr0, _ = iter_plan(cfg, 0)
    assert sorted(wr0) == sorted(wr1)
    o += front(cfg, wr1)
    o += stamp(cfg, 3)
    b1 = pace(M1, dict(enumerate(F1)), keep_order=True)
    b0 = pace(M0, dict(enumerate(F0)), keep_order=True)
    _, q = add_lgkm_waits(b0)
    b1w, q1 = add_lgkm_waits(b1, init=q)
    b0w, q0 = add_lgkm_waits(b0, init=q1)
    assert q0 == q
    tail = L(f"s_add_u32 s{sCNT}, s{sCNT}, 1", f"s_cmp_lt_u32 s{sCNT}, 7", "s_cbranch_scc1 L_loop")
    errs = check_hazards(b1w + b0w + tail + b1w, "loop")
    assert not errs, "\n".join(errs)
    print("loop: mfma", len(M1), "est cycles", est_cycles(b1w), est_cycles(b0w), file=sys.stderr)
    o.append(I(".p2align 6", "dir"))
    o += lab("L_loop") + b1w + lab("L_loop_mid") + b0w + tail
    o += stamp(cfg, 4)
    o += back(cfg, wr1, q)
    o += oproj(cfg)
    o += lab("L_exit") + L("s_endpgm")
    o += fallback(cfg, wr1)
    o += lab("L_end")
    errs = check_hazards(o, "k")
    if errs: print("fixing:", "\n".join(errs[:20]), file=sys.stderr)
    o = fix_hazards(o)
    return o

def desc(name, vg, acc):
    return f""".amdhsa_kernel {name}
  .amdhsa_next_free_vgpr {vg}
  .amdhsa_next_free_sgpr 102
  .amdhsa_accum_offset {acc}
  .amdhsa_group_segment_fixed_size 0
  .amdhsa_kernarg_size 104
  .amdhsa_user_sgpr_count 2
  .amdhsa_user_sgpr_kernarg_segment_ptr 1
  .amdhsa_system_sgpr_workgroup_id_x 1
.end_amdhsa_kernel
"""

def build(cfg, dev):
    k = kernel(cfg)
    n1 = NAME + "_kernel"
    s = open("cdna_kernels/" + NAME + ".s.ref").read().split("; Override")[0]
    s += f"; @launch {'kernel='+n1+' ' if dev else ''}grid=(256,1,1) block=(256,1,1) lds={LDS}\n"
    s += '.amdgcn_target "amdgcn-amd-amdhsa--gfx950"\n.text\n'
    s += f".globl {n1}\n.p2align 8\n.type {n1},@function\n{n1}:\n" + text(k) + "\n"
    s += '.section .rodata,"a"\n.p2align 6\n' + desc(n1, 512, 256)
    return s

if __name__ == "__main__":
    cfg = Cfg()
    out = "cdna_kernels/" + NAME + ".s"
    for a in sys.argv[1:]:
        if a.startswith("-o"):
            out = a[2:]
        else:
            k, v = a.split("=")
            assert hasattr(Cfg, k), k
            setattr(cfg, k, int(v))
    open(out, "w").write(build(cfg, "cdna_kernels" not in out))
```
